```python
import torch

def _softmax(x, axis=-1):
    return torch.softmax(x, dim=axis)
def _gelu(x):
    return torch.nn.functional.gelu(x, approximate="tanh")
def _silu(x):
    return torch.nn.functional.silu(x)
def _sigmoid(x):
    return torch.sigmoid(x)
def _layernorm(x, axis=-1, eps=1e-5):
    m = x.mean(dim=axis, keepdim=True)
    v = x.var(dim=axis, keepdim=True, unbiased=False)
    return (x - m) / torch.sqrt(v + eps)
def _scatter_add(tgt, idx, src, axis=0):
    return tgt.clone().index_add_(axis, idx, src)
def _segment_sum(src, seg, n):
    out = torch.zeros((n,) + src.shape[1:], dtype=src.dtype)
    return out.index_add_(0, seg, src)
def _pad(x, pw):
    flat = tuple(v for pair in reversed(pw) for v in pair)
    return torch.nn.functional.pad(x, flat)

kernel_name = 'sequential_preLN__mha_block__dense_activation_silu__prompt'

def setup_inputs():

    _w = (lambda a: (lambda t: t.to(torch.bfloat16) if t.is_floating_point() else t)(torch.as_tensor(a)))
    def _A_setup():
        B, S, D, H = 1, 2048, 448, 16
        return {
            "x": _w((lambda *s: torch.randn(*s, dtype=torch.bfloat16) * 0.05)(B, S, D)),
            "wqkv": _w((lambda *s: torch.randn(*s, dtype=torch.bfloat16) * 0.05)(D, 3 * D)),
            "wo": _w((lambda *s: torch.randn(*s, dtype=torch.bfloat16) * 0.05)(D, D)),
        }
    _A_in = _A_setup()

    def _B_setup():
        B, S, D, F = 1, 2048, 448, 1792
        return {
            "x": _w((lambda *s: torch.randn(*s, dtype=torch.bfloat16) * 0.05)(B, S, D)),
            "w1": _w((lambda *s: torch.randn(*s, dtype=torch.bfloat16) * 0.8)(D, F) * (D ** -0.5)),
            "w2": _w((lambda *s: torch.randn(*s, dtype=torch.bfloat16) * 0.2)(F, D) * (F ** -0.5)),
        }
    _B_in = _B_setup()

    return {
        "A_x": _A_in["x"],
        "A_wqkv": _A_in["wqkv"],
        "A_wo": _A_in["wo"],
        "B_x": _B_in["x"],
        "B_w1": _B_in["w1"],
        "B_w2": _B_in["w2"],
    }

def reference(A_x, A_wqkv, A_wo, B_x, B_w1, B_w2):
    def _A_ref(x, wqkv, wo):
        B, S, D = x.shape
        H = 16
        Dh = D // H
        qkv = (lambda x, *d: x.permute(*d))((x @ wqkv).reshape(B, S, 3, H, Dh), 2, 0, 3, 1, 4)
        q, k, v = qkv[0], qkv[1], qkv[2]
        scores = torch.einsum("bhqd,bhkd->bhqk", q, k) * (Dh ** -0.5)
        p = _softmax(scores, axis=-1)
        o = torch.einsum("bhqk,bhkd->bhqd", p, v)
        return (lambda x, *d: x.permute(*d))(o, 0, 2, 1, 3).reshape(B, S, D) @ wo

    def _B_ref(x, w1, w2):
        h = torch.einsum("bsd,df->bsf", x, w1)
        h = _silu(h)
        out = torch.einsum("bsf,fd->bsd", h, w2)
        return out

    x = A_x
    h = x + _A_ref(_layernorm(x, axis=-1), A_wqkv, A_wo)
    h2 = h + _B_ref(_layernorm(h, axis=-1), B_w1, B_w2)
    return h2
```

```python
import re

def _regs(tok):
    tok = tok.strip()
    tok = re.sub(r'^-', '', tok)
    m = re.match(r'^abs\((.*)\)$', tok)
    if m: tok = m.group(1)
    tok = tok.strip('|')
    m = re.match(r'^([vsa])(\d+)$', tok)
    if m: return [(m.group(1), int(m.group(2)))]
    m = re.match(r'^([vsa])\[(\d+):(\d+)\]$', tok)
    if m: return [(m.group(1), i) for i in range(int(m.group(2)), int(m.group(3)) + 1)]
    if tok in ('vcc', 'vcc_lo', 'vcc_hi'): return [('x', 'vcc')]
    if tok in ('exec', 'exec_lo', 'exec_hi'): return [('x', 'exec')]
    if tok == 'm0': return [('x', 'm0')]
    return []

def _split_ops(s):
    out, depth, cur = [], 0, ''
    for ch in s:
        if ch in '[(': depth += 1
        if ch in '])': depth -= 1
        if ch == ',' and depth == 0:
            out.append(cur.strip()); cur = ''
        else: cur += ch
    if cur.strip(): out.append(cur.strip())
    return out

TRANS = ('v_exp_f32', 'v_log_f32', 'v_rcp_f32', 'v_rsq_f32', 'v_sqrt_f32', 'v_sin_f32', 'v_cos_f32',
         'v_exp_f16', 'v_rcp_f16', 'v_rcp_iflag_f32')

class Ins:
    __slots__ = ('text', 'mn', 'kind', 'w', 'r', 'passes', 'srcc', 'srcab', 'wide_store', 'dpp', 'sdwa', 'lds_dma',
                 'nop', 'label', 'target', 'vm', 'lgkm', 'dst_load', 'comment')
    def __init__(self, text):
        self.text = text
        self.w, self.r = [], []
        self.passes = 0; self.srcc = []; self.srcab = []; self.wide_store = []
        self.dpp = False; self.sdwa = False; self.lds_dma = False; self.nop = 1
        self.label = None; self.target = None; self.vm = 0; self.lgkm = 0; self.dst_load = []
        t = text.split(';')[0].strip()
        if t.endswith(':'):
            self.kind = 'label'; self.label = t[:-1]; self.mn = ''; self.nop = 0; return
        if t.startswith('.') or not t:
            self.kind = 'dir'; self.mn = ''; self.nop = 0; return
        parts = t.split(None, 1)
        mn = parts[0]; self.mn = mn
        rest = parts[1] if len(parts) > 1 else ''
        ops = _split_ops(rest)
        mods = ''
        if ops:
            lp = ops[-1].split(None, 1)
            if len(lp) > 1:
                ops[-1] = lp[0]; mods = lp[1]
        base = re.sub(r'_(e32|e64|dpp|sdwa)$', '', mn)
        R = lambda i: _regs(ops[i]) if i < len(ops) else []
        allr = lambda lo: [x for i in range(lo, len(ops)) for x in R(i)]
        if 'row_' in mods or 'quad_perm' in mods or 'wave_' in mods or mn.endswith('_dpp') or 'row_' in rest:
            self.dpp = True
        if mn.endswith('_sdwa') or 'dst_sel' in mods or 'dst_sel' in rest: self.sdwa = True
        if mn == 's_nop':
            self.kind = 'nop'; self.nop = int(ops[0], 0) + 1
        elif mn == 's_waitcnt':
            self.kind = 'wait'
        elif mn in ('s_barrier', 's_endpgm', 's_setprio', 's_sleep', 's_sethalt', 's_setkill'):
            self.kind = 'misc'
        elif mn.startswith('s_cbranch') or mn == 's_branch':
            self.kind = 'branch'; self.target = ops[0]
            if 'vcc' in mn: self.r = [('x', 'vcc')]
            if 'exec' in mn: self.r = [('x', 'exec')]
        elif mn.startswith('s_load') or mn.startswith('s_buffer_load') or mn in ('s_memtime', 's_memrealtime'):
            self.kind = 'smem'; self.w = R(0); self.r = allr(1); self.lgkm = 1; self.dst_load = R(0)
        elif mn.startswith('s_cmp') or mn.startswith('s_bitcmp'):
            self.kind = 'salu'; self.r = allr(0)
        elif mn.startswith('s_'):
            self.kind = 'salu'; self.w = R(0); self.r = allr(1)
            if 'saveexec' in mn: self.w += [('x', 'exec')]; self.r += [('x', 'exec')]
            if mn in ('s_addk_i32', 's_mulk_i32'): self.r += R(0)
        elif mn.startswith('v_mfma'):
            self.kind = 'mfma'; self.w = R(0); self.srcab = R(1) + R(2); self.srcc = R(3); self.r = self.srcab + self.srcc
            if '32x32x16' in mn or '32x32x8' in mn: self.passes = 8
            elif '16x16x32' in mn or '16x16x16' in mn: self.passes = 4
            else: raise ValueError(mn)
        elif mn.startswith('buffer_') or mn.startswith('global_'):
            self.kind = 'vmem'; self.vm = 1
            islds = re.search(r'\blds\b', mods) is not None or '_lds_' in mn
            if mn in ('buffer_wbl2', 'buffer_inv'):
                pass
            elif islds:
                self.lds_dma = True; self.r = allr(0) + [('x', 'm0')]
            elif 'load' in mn:
                self.w = R(0); self.r = allr(1); self.dst_load = R(0)
                if 'd16' in mn: self.r += []
            elif 'store' in mn:
                self.r = allr(0)
                data = R(0) if mn.startswith('buffer_') else R(1)
                if len(data) >= 3: self.wide_store = data
            elif 'atomic' in mn:
                self.r = allr(0)
                if re.search(r'\bsc0\b', mods):
                    self.w = R(0); self.dst_load = R(0)
            else: raise ValueError(mn)
        elif mn.startswith('ds_'):
            self.kind = 'ds'; self.lgkm = 1
            if 'read' in mn or 'permute' in mn or 'swizzle' in mn or 'rtn' in mn:
                self.w = R(0); self.r = allr(1); self.dst_load = R(0)
            else:
                self.r = allr(0)
        elif mn.startswith('v_'):
            self.kind = 'valu'
            if base.startswith('v_cmp'):
                self.w = R(0); self.r = allr(1)
                if base.startswith('v_cmpx'): self.w += [('x', 'exec')]
            elif base.startswith('v_permlane') and 'swap' in base:
                self.w = R(0) + R(1); self.r = R(0) + R(1)
            elif base in ('v_add_co_u32', 'v_sub_co_u32', 'v_addc_co_u32', 'v_subb_co_u32', 'v_subrev_co_u32'):
                self.w = R(0) + R(1); self.r = allr(2)
            elif base == 'v_nop':
                pass
            else:
                self.w = R(0); self.r = allr(1)
                if base in ('v_fmac_f32', 'v_dot2c_f32_bf16', 'v_dot2c_f32_f16', 'v_pk_fmac_f16', 'v_writelane_b32') or 'UNUSED_PRESERVE' in rest:
                    self.r += R(0)
                if self.dpp: self.r += R(0)
                if base == 'v_cndmask_b32' and len(ops) == 3: self.r += [('x', 'vcc')]
        else:
            raise ValueError('unknown instruction: ' + text)
        self.mn = base if self.kind in ('valu',) else mn

def _ov(a, b):
    return bool(set(a) & set(b))

def need_states(p, c):
    n = 0
    pv = [x for x in p.w if x[0] in 'va']
    ps = [x for x in p.w if x[0] == 's' or x == ('x', 'vcc')]
    if p.kind == 'valu':
        if c.kind == 'mfma' and _ov(pv, c.r): n = max(n, 2)
        if c.kind == 'valu':
            if p.mn in TRANS and c.mn not in TRANS and _ov(pv, c.r): n = max(n, 1)
            if p.mn in TRANS and c.mn in TRANS and _ov(pv, c.r): n = max(n, 1)
            if c.dpp and _ov(pv, c.r): n = max(n, 2)
            if c.mn.startswith('v_permlane') and _ov(pv, c.r): n = max(n, 2)
            if c.mn in ('v_readlane_b32', 'v_readfirstlane_b32') and _ov(pv, c.r): n = max(n, 1)
            if _ov(ps, c.r):
                n = max(n, 4 if c.mn in ('v_readlane_b32', 'v_writelane_b32') else 2)
            if p.sdwa and (_ov(pv, c.r) or _ov(pv, c.w)): n = max(n, 1)
            if p.mn.startswith('v_dot') and (_ov(pv, c.r) or _ov(pv, c.w)):
                if not (c.mn == p.mn and _ov(pv, c.w)): n = max(n, 3)
            if ('x', 'exec') in p.w:
                n = max(n, 5 if c.dpp else 4 if ('lane' in c.mn) else 0)
        if c.kind == 'vmem' and _ov(ps, c.r): n = max(n, 5)
        if c.kind in ('salu', 'smem', 'branch') and _ov(ps, c.r): n = max(n, 5 if c.kind == 'branch' else 2)
        if ('x', 'exec') in p.w and c.kind == 'mfma': n = max(n, 4)
        if p.mn.startswith('v_dot') and c.kind in ('vmem', 'ds', 'mfma') and _ov(pv, c.r): n = max(n, 3)
    if p.kind == 'mfma':
        t_ab = {4: 8, 8: 12}[p.passes]; t_c = {4: 6, 8: 10}[p.passes]; t_war = {4: 3, 8: 7}[p.passes]
        if c.kind == 'mfma':
            if _ov(p.w, c.srcab): n = max(n, t_ab)
            if _ov(p.w, c.srcc) and not (p.w == c.srcc and p.passes == c.passes): n = max(n, t_c)
            if _ov(p.w, c.w) and not (p.w == c.w and p.passes == c.passes): n = max(n, t_c)
        elif c.kind in ('valu', 'vmem', 'ds'):
            if _ov(p.w, c.r) or _ov(p.w, c.w): n = max(n, t_ab)
            if c.kind == 'valu' and _ov(p.srcc, c.w): n = max(n, t_war)
            if c.kind in ('vmem', 'ds') and _ov(p.srcc, c.w): n = max(n, t_war)
    if p.kind == 'salu':
        if ('x', 'm0') in p.w and (c.lds_dma or 'addtid' in c.mn): n = max(n, 1)
    if p.wide_store:
        if c.kind == 'valu' and _ov(p.wide_store, c.w): n = max(n, 2)
        elif _ov(p.wide_store, c.w): n = max(n, 1)
    return n

class Kernel:
    def __init__(self, name):
        self.name = name
        self.ins = []
        self.maxv = 0; self.maxs = 0; self.maxa = -1
        self.uid = 0
    def e(self, text):
        for line in text.split('\n'):
            line = line.strip()
            if not line or line.startswith(';'): continue
            self.ins.append(Ins(line))
    def label(self, l): self.e(l + ':')
    def newlabel(self, p='L'):
        self.uid += 1
        return f'{p}_{self.name}_{self.uid}'

    def fix_hazards(self, verbose=False):
        LOOK = 14
        changed = True; total = 0
        while changed:
            changed = False
            ins = self.ins
            labels = {x.label: i for i, x in enumerate(ins) if x.kind == 'label'}
            srcs = {}
            for i, x in enumerate(ins):
                if x.kind == 'branch' and x.target in labels:
                    srcs.setdefault(labels[x.target], []).append(i)
            for i, c in enumerate(ins):
                if c.kind in ('label', 'dir', 'nop', 'wait', 'misc'): continue
                worst = 0
                stack = [(i - 1, 0)]
                seen = set()
                while stack:
                    j, d = stack.pop()
                    while j >= 0 and d < LOOK:
                        if (j, d) in seen: break
                        seen.add((j, d))
                        p = ins[j]
                        if p.kind == 'label':
                            for s in srcs.get(j, []): stack.append((s, d))
                            j -= 1; continue
                        if p.kind == 'dir': j -= 1; continue
                        if (p.mn == 's_branch' or p.mn == 's_endpgm') and j != i - 1 and (j + 1) <= i and ins[j+1].kind == 'label' and False:
                            break
                        nd = need_states(p, c)
                        if nd > d: worst = max(worst, nd - d)
                        d += p.nop
                        if j - 1 >= 0 and ins[j-1].mn in ('s_branch', 's_endpgm'): break
                        j -= 1
                if worst > 0:
                    k = worst
                    new = []
                    while k > 0:
                        t = min(k, 16); new.append(Ins(f's_nop {t-1}')); k -= t
                    if verbose: print(f'[{self.name}] +{worst} states before: {c.text}')
                    self.ins[i:i] = new
                    total += worst
                    changed = True
                    break
        return total

    def check_waits(self):
        ins = self.ins
        labels = {x.label: i for i, x in enumerate(ins) if x.kind == 'label'}
        errs = []
        def run(start, vm, lg, taken, depth):
            i = start
            while i < len(ins):
                x = ins[i]
                if x.kind == 'wait':
                    m = re.search(r'vmcnt\((\d+)\)', x.text)
                    if m:
                        n = int(m.group(1)); vm = vm[len(vm) - n:] if n < len(vm) else vm
                        if n == 0: vm = []
                    m = re.search(r'lgkmcnt\((\d+)\)', x.text)
                    if m:
                        n = int(m.group(1))
                        if n == 0: lg = []
                        elif any(k == 'smem' for k, _ in lg): pass
                        elif n < len(lg): lg = lg[len(lg) - n:]
                elif x.kind in ('label', 'dir', 'nop'): pass
                else:
                    touched = set(x.r) | set(x.w)
                    for q, nm in ((vm, 'vm'), (lg, 'lgkm')):
                        for k, d in q:
                            hit = touched & set(d)
                            if hit:
                                if x.kind == 'vmem' and 'd16' in x.mn and k == 'vmem' and not (set(x.r) & set(d)): continue
                                if x.kind == k and x.kind in ('vmem', 'ds') and not (set(x.r) & set(d)): continue
                                errs.append(f'[{self.name}] missing {nm} wait: "{x.text}" touches {sorted(hit)[:4]}')
                    if x.vm:
                        vm = vm + [('vmem', x.dst_load)]
                        if len(vm) > 63: errs.append(f'[{self.name}] vmcnt overflow (>63) at {x.text}')
                    if x.lgkm:
                        lg = lg + [(x.kind, x.dst_load)]
                    if x.mn == 's_endpgm': return
                    if x.kind == 'branch' and x.target in labels:
                        t = labels[x.target]
                        if x.mn == 's_branch':
                            if t <= i:
                                if i in taken: return
                                taken = taken | {i}
                            i = t; continue
                        if t <= i:
                            if i not in taken:
                                run(t, list(vm), list(lg), taken | {i}, depth + 1)
                        else:
                            if depth < 6 and (i, 'f') not in taken:
                                run(t, list(vm), list(lg), taken | {(i, 'f')}, depth + 1)
                i += 1
        run(0, [], [], frozenset(), 0)
        return sorted(set(errs))

    def finalize(self):
        for x in self.ins:
            for (f, n) in x.w + x.r:
                if f == 'v': self.maxv = max(self.maxv, n)
                if f == 's': self.maxs = max(self.maxs, n)
                if f == 'a': self.maxa = max(self.maxa, n)
    def text(self):
        out = [f'.globl {self.name}', '.p2align 8', f'.type {self.name},@function', f'{self.name}:']
        for x in self.ins:
            out.append(x.text if x.kind == 'label' else '  ' + x.text)
        return '\n'.join(out) + '\n'
    def descriptor(self, kernarg=72, wgy=False):
        self.finalize()
        nv = self.maxv + 1
        acc = (nv + 3) // 4 * 4
        tot = acc + (self.maxa + 1) if self.maxa >= 0 else nv
        ns = max(self.maxs + 1, 16)
        assert acc <= 256 and tot <= 512 and ns <= 102, (acc, tot, ns)
        s = f'.p2align 6\n.amdhsa_kernel {self.name}\n  .amdhsa_next_free_vgpr {tot}\n  .amdhsa_next_free_sgpr {ns}\n'
        s += f'  .amdhsa_accum_offset {acc}\n  .amdhsa_group_segment_fixed_size 0\n  .amdhsa_kernarg_size {kernarg}\n'
        s += '  .amdhsa_user_sgpr_count 2\n  .amdhsa_user_sgpr_kernarg_segment_ptr 1\n  .amdhsa_system_sgpr_workgroup_id_x 1\n'
        if wgy: s += '  .amdhsa_system_sgpr_workgroup_id_y 1\n'
        s += '.end_amdhsa_kernel\n'
        return s

def build_file(header_comments, launches, kernels, verbose=False):
    out = list(header_comments)
    for (k, g, b, lds) in launches:
        out.append(f'; @launch kernel={k} grid=({g[0]},{g[1]},{g[2]}) block=({b[0]},{b[1]},{b[2]}) lds={lds}')
    out.append('.amdgcn_target "amdgcn-amd-amdhsa--gfx950"')
    out.append('.text')
    txt = '\n'.join(out) + '\n'
    for k in kernels:
        n = k.fix_hazards(verbose)
        errs = k.check_waits()
        for e in errs: print('WAITCHECK', e)
        txt += k.text()
    txt += '.section .rodata,"a"\n'
    for k in kernels:
        txt += k.descriptor()
        print(f'{k.name}: vgpr {k.maxv+1} agpr {k.maxa+1} sgpr {k.maxs+1} instrs {len(k.ins)}')
    return txt
```

```python
import sys, math
from asmlib import *

S, D, H, DH, F = 2048, 448, 16, 28, 1792
A_X, A_WQKV, A_WO, A_BX, A_W1, A_W2, A_OUT, A_DBG, A_WS = 0, 8, 16, 24, 32, 40, 48, 56, 64
WS_XN   = 0x0000000
WS_WQKV = 0x01C0000
WS_WO   = 0x0310000
WS_W1   = 0x0380000
WS_W2   = 0x0508000
WS_CS1  = 0x0690000
WS_KM   = 0x0698000
WS_ST   = 0x06A0000
WS_QF   = 0x0700000
WS_KV   = 0x0900000
WS_OF   = 0x0D00000
WS_HF   = 0x0F00000
WS_H1   = 0x1100000
WS_END  = 0x1800000
QSCALE = math.log2(math.e) / math.sqrt(DH)

def f2u(x):
    import struct
    return struct.unpack('<I', struct.pack('<f', x))[0]

def srd(k, base, ptr_s, nbytes, add=0):
    if add:
        k.e(f"s_add_u32 s{base}, s{ptr_s}, {add:#x}")
        k.e(f"s_addc_u32 s{base+1}, s{ptr_s+1}, 0")
    else:
        k.e(f"s_mov_b32 s{base}, s{ptr_s}")
        k.e(f"s_mov_b32 s{base+1}, s{ptr_s+1}")
    k.e(f"s_mov_b32 s{base+2}, {nbytes:#x}")
    k.e(f"s_mov_b32 s{base+3}, 0x00020000")

def vr(b, n=4): return f"v[{b}:{b+n-1}]"
def mfma(k, d, a, b, c=None):
    cs = vr(d, 16) if c is None else c
    k.e(f"v_mfma_f32_32x32x16_bf16 {vr(d,16)}, {vr(a)}, {vr(b)}, {cs}")

def halfsum(k, v, tmp):
    k.e(f"v_mov_b32 v{tmp}, v{v}")
    k.e(f"v_permlane32_swap_b32 v{tmp}, v{v}")
    k.e(f"v_add_f32 v{v}, v{v}, v{tmp}")

def k0_prep():
    k = Kernel("prep_kernel")
    NWG = 240
    k.e(f"""
    s_cmp_ge_u32 s2, {NWG}
    s_cbranch_scc1 L_prep_end
    s_load_dwordx4 s[4:7], s[0:1], {A_X}
    s_load_dwordx2 s[8:9], s[0:1], {A_WO}
    s_load_dwordx4 s[12:15], s[0:1], {A_W1}
    s_load_dwordx2 s[10:11], s[0:1], {A_WS}
    v_lshrrev_b32 v1, 6, v0
    v_and_b32 v0, 63, v0
    v_readfirstlane_b32 s3, v1
    s_lshl_b32 s16, s2, 2
    s_add_u32 s16, s16, s3
    s_waitcnt lgkmcnt(0)
    """)
    srd(k, 20, 10, WS_END)
    k.e("s_cmp_ge_u32 s16, 256\n s_cbranch_scc1 L_prep_repack")
    srd(k, 24, 4, S * D * 2)
    k.e(f"""
    v_and_b32 v2, 7, v0
    v_lshrrev_b32 v3, 3, v0
    v_mul_u32_u24 v4, {D*2}, v2
    v_lshl_add_u32 v4, v3, 4, v4
    s_mul_i32 s17, s16, {8*D*2}
    """)
    for i in range(7):
        k.e(f"buffer_load_dwordx4 {vr(8+4*i)}, v4, s[24:27], s17 offen offset:{i*128}")
    k.e(f"""
    s_lshr_b32 s18, s16, 2
    s_mul_i32 s18, s18, {28*1024}
    s_and_b32 s19, s16, 3
    s_lshl_b32 s19, s19, 7
    s_add_u32 s18, s18, s19
    s_add_u32 s18, s18, {WS_XN}
    v_lshlrev_b32 v5, 4, v2
    v_lshl_add_u32 v5, v3, 9, v5
    v_mov_b32 v40, 0
    v_mov_b32 v41, 0
    v_mov_b32 v42, 0x3f803f80
    """)
    for i in range(7):
        k.e(f"s_waitcnt vmcnt({6-i})")
        for j in range(4):
            k.e(f"v_dot2c_f32_bf16 v40, v{8+4*i+j}, v42")
            k.e(f"v_dot2c_f32_bf16 v41, v{8+4*i+j}, v{8+4*i+j}")
    for v in (40, 41):
        k.e(f"v_add_f32_dpp v{v}, v{v}, v{v} row_ror:8 row_mask:0xf bank_mask:0xf")
        k.e(f"v_mov_b32 v43, v{v}")
        k.e(f"v_permlane16_swap_b32 v43, v{v}")
        k.e(f"v_add_f32 v{v}, v{v}, v43")
        halfsum(k, v, 43)
    k.e(f"""
    v_mul_f32 v40, {f2u(1.0/D):#x}, v40
    v_mul_f32 v41, {f2u(1.0/D):#x}, v41
    v_fma_f32 v41, -v40, v40, v41
    v_max_f32 v41, 0, v41
    v_add_f32 v41, {f2u(1e-5):#x}, v41
    v_rsq_f32 v41, v41
    v_mul_f32 v40, v40, v41
    """)
    for i in range(7):
        for j in range(4):
            r = 8 + 4*i + j
            k.e(f"v_lshlrev_b32 v44, 16, v{r}")
            k.e(f"v_and_b32 v45, 0xffff0000, v{r}")
            k.e(f"v_fma_f32 v44, v44, v41, -v40")
            k.e(f"v_fma_f32 v45, v45, v41, -v40")
            k.e(f"v_cvt_pk_bf16_f32 v{r}, v44, v45")
        k.e(f"buffer_store_dwordx4 {vr(8+4*i)}, v5, s[20:23], s18 offen")
        if i < 6: k.e("s_add_u32 s18, s18, 4096")
    k.e("s_endpgm")
    k.label("L_prep_repack")
    k.e(f"""
    v_and_b32 v2, 31, v0
    v_lshrrev_b32 v3, 5, v0
    v_lshlrev_b32 v2, 1, v2
    v_lshlrev_b32 v6, 4, v0
    s_sub_u32 s16, s16, 256
    s_cmp_lt_u32 s16, 192
    s_cbranch_scc1 L_prep_wqkv
    s_sub_u32 s16, s16, 192
    s_cmp_lt_u32 s16, 64
    s_cbranch_scc1 L_prep_wo
    s_sub_u32 s16, s16, 64
    s_cmp_lt_u32 s16, 224
    s_cbranch_scc1 L_prep_w1
    s_sub_u32 s16, s16, 224
    s_branch L_prep_w2
    """)
    def loads(stride, joff, soff_reg, f, voff="v4", voff_hi=None):
        prev = 0
        for j in range(8):
            d = joff(j) * stride
            vo = voff_hi if (voff_hi and j >= 4) else voff
            if d <= 4095:
                k.e(f"buffer_load_ushort v{16+8*f+j}, {vo}, s[24:27], s{soff_reg} offen offset:{d}")
            else:
                k.e(f"s_add_u32 s30, s{soff_reg}, {d}")
                k.e(f"buffer_load_ushort v{16+8*f+j}, {vo}, s[24:27], s30 offen")
    def packstore(dst_reg, colsum=False):
        for f in range(7):
            k.e(f"s_waitcnt vmcnt({(6-f)*8 + f})")
            for q in range(4):
                k.e(f"v_lshl_or_b32 v{80+4*f+q}, v{16+8*f+2*q+1}, 16, v{16+8*f+2*q}")
                if colsum: k.e(f"v_dot2c_f32_bf16 v8, v{80+4*f+q}, v9")
            if f * 1024 <= 4095:
                k.e(f"buffer_store_dwordx4 {vr(80+4*f)}, v6, s[20:23], s{dst_reg} offen offset:{f*1024}")
            else:
                if f == 4: k.e(f"s_add_u32 s{dst_reg}, s{dst_reg}, 4096")
                k.e(f"buffer_store_dwordx4 {vr(80+4*f)}, v6, s[20:23], s{dst_reg} offen offset:{(f-4)*1024}")
    nat = lambda j: j
    perm = lambda j: (j >> 2) * 8 + (j & 3)
    k.label("L_prep_wqkv")
    srd(k, 24, 6, D * 3 * D * 2)
    st = 3 * D * 2
    k.e(f"""
    v_mul_u32_u24 v4, {8*st}, v3
    v_add_u32 v4, v4, v2
    s_lshr_b32 s17, s16, 2
    s_and_b32 s18, s16, 3
    s_mul_i32 s19, s17, 0x5556
    s_lshr_b32 s19, s19, 16
    s_mul_i32 s28, s19, 3
    s_sub_u32 s28, s17, s28
    s_mul_i32 s29, s28, {D*2}
    s_mul_i32 s19, s19, {DH*2}
    s_add_u32 s29, s29, s19
    s_mul_i32 s19, s18, {7*16*st}
    s_add_u32 s29, s29, s19
    s_mul_i32 s31, s16, {7*1024}
    s_add_u32 s31, s31, {WS_WQKV}
    """)
    for f in range(7):
        loads(st, nat, 29, f)
        if f < 6: k.e(f"s_add_u32 s29, s29, {16*st}")
    packstore(31)
    k.e("s_endpgm")
    k.label("L_prep_wo")
    srd(k, 24, 8, D * D * 2)
    st = D * 2
    k.e(f"""
    v_mul_u32_u24 v4, {4*st}, v3
    v_add_u32 v4, v4, v2
    v_lshlrev_b32 v5, 30, v3
    v_add_u32 v5, v5, v4
    s_mul_i32 s17, s16, 7
    s_mul_i32 s31, s16, {7*1024}
    s_add_u32 s31, s31, {WS_WO}
    """)
    for f in range(7):
        k.e(f"""
        s_lshr_b32 s18, s17, 5
        s_lshl_b32 s18, s18, 6
        s_and_b32 s19, s17, 31
        s_lshr_b32 s28, s19, 1
        s_mul_i32 s28, s28, {DH*st}
        s_add_u32 s18, s18, s28
        s_and_b32 s19, s19, 1
        s_mul_i32 s28, s19, {16*st}
        s_add_u32 s29, s18, s28
        s_lshl_b32 s19, s19, 30
        v_mul_lo_u32 v{8+f}, v3, s19
        v_add_u32 v{8+f}, v{8+f}, v4
        s_add_u32 s17, s17, 1
        """)
        loads(st, perm, 29, f, "v4", f"v{8+f}")
    packstore(31)
    k.e("s_endpgm")
    k.label("L_prep_w1")
    srd(k, 24, 12, D * F * 2)
    st = F * 2
    k.e(f"""
    v_mul_u32_u24 v4, {4*st}, v3
    v_add_u32 v4, v4, v2
    s_lshr_b32 s17, s16, 2
    s_and_b32 s18, s16, 3
    s_lshl_b32 s29, s17, 6
    s_mul_i32 s19, s18, {7*16*st}
    s_add_u32 s29, s29, s19
    s_mul_i32 s31, s16, {7*1024}
    s_add_u32 s31, s31, {WS_W1}
    v_mov_b32 v8, 0
    v_mov_b32 v9, 0x3f803f80
    """)
    for f in range(7):
        loads(st, perm, 29, f)
        if f < 6: k.e(f"s_add_u32 s29, s29, {16*st}")
    packstore(31, colsum=True)
    halfsum(k, 8, 10)
    k.e(f"""
    s_mul_i32 s18, s18, {F*4}
    s_lshl_b32 s17, s17, 7
    s_add_u32 s18, s18, s17
    s_add_u32 s18, s18, {WS_CS1}
    v_lshlrev_b32 v2, 1, v2
    s_mov_b64 exec, 0xffffffff
    buffer_store_dword v8, v2, s[20:23], s18 offen
    s_endpgm
    """)
    k.label("L_prep_w2")
    srd(k, 24, 14, F * D * 2)
    st = D * 2
    k.e(f"""
    v_mul_u32_u24 v4, {4*st}, v3
    v_add_u32 v4, v4, v2
    s_lshr_b32 s17, s16, 4
    s_and_b32 s18, s16, 15
    s_lshl_b32 s29, s17, 6
    s_mul_i32 s19, s18, {7*16*st}
    s_add_u32 s29, s29, s19
    s_mul_i32 s31, s16, {7*1024}
    s_add_u32 s31, s31, {WS_W2}
    """)
    for f in range(7):
        loads(st, perm, 29, f)
        if f < 6: k.e(f"s_add_u32 s29, s29, {16*st}")
    packstore(31)
    k.label("L_prep_end")
    k.e("s_endpgm")
    return k, (NWG, 1, 1), (256, 1, 1), 0

def ws_prolog(k, nwg, endlabel):
    k.e(f"""
    s_cmp_ge_u32 s2, {nwg}
    s_cbranch_scc1 {endlabel}
    s_load_dwordx2 s[10:11], s[0:1], {A_WS}
    v_lshrrev_b32 v1, 6, v0
    v_and_b32 v0, 63, v0
    v_readfirstlane_b32 s3, v1
    v_lshlrev_b32 v2, 4, v0
    """)

def issue_tok_loads(k, XB, soff):
    for ks in range(28):
        if ks and ks % 4 == 0: k.e(f"s_add_u32 s{soff}, s{soff}, 4096")
        k.e(f"buffer_load_dwordx4 {vr(XB+4*ks)}, v2, s[20:23], s{soff} offen offset:{(ks%4)*1024}")

def issue_w_dma(k, ntiles, sg, sl):
    for f in range(ntiles):
        for part in range(2):
            n = 4 if part == 0 else 3
            a = f * 28672 + part * 4096
            k.e(f"s_add_u32 s40, s{sl}, {a}")
            k.e(f"s_mov_b32 m0, s40")
            k.e(f"s_add_u32 s41, s{sg}, {a}")
            for i in range(n):
                k.e(f"buffer_load_dwordx4 v2, s[20:23], s41 offen offset:{i*1024} lds")

def gemm_tile(k, f, XB, WB, RING, acc, swap=False, filler=None):
    filler = list(filler or [])
    per = (len(filler) + 27) // 28
    base = f * 28672
    def rd(ks):
        k.e(f"ds_read_b128 {vr(WB+4*(ks%RING))}, v2 offset:{base+ks*1024}") if base + ks*1024 < 65536 else \
            k.e(f"ds_read_b128 {vr(WB+4*(ks%RING))}, v3 offset:{base+ks*1024-65536}")
    pre = RING - 1
    for ks in range(pre): rd(ks)
    for ks in range(28):
        if ks + pre < 28:
            rd(ks + pre)
        outstanding = min(pre, 27 - ks)
        k.e(f"s_waitcnt lgkmcnt({outstanding})")
        w, x = WB + 4*(ks % RING), XB + 4*ks
        a, b = (x, w) if swap else (w, x)
        mfma(k, acc, a, b, "0" if ks == 0 else None)
        for _ in range(per):
            if filler: k.e(filler.pop(0))
    for s in filler: k.e(s)

def k1_qkv():
    k = Kernel("qkv_kernel")
    ws_prolog(k, 256, "L_qkv_end")
    XB, WB, RING, ACC = 8, 120, 6, 144
    k.e(f"""
    s_and_b32 s16, s2, 7
    s_lshl_b32 s16, s16, 1
    s_bfe_u32 s17, s2, 0x10003
    s_add_u32 s16, s16, s17
    s_lshr_b32 s17, s2, 4
    s_lshl_b32 s17, s17, 2
    s_add_u32 s17, s17, s3
    v_add_u32 v3, 0x10000, v2
    s_mul_i32 s18, s17, 28672
    s_add_u32 s18, s18, {WS_XN}
    s_mul_i32 s19, s16, {3*28672}
    s_mul_i32 s28, s3, 7168
    s_add_u32 s19, s19, s28
    s_add_u32 s19, s19, {WS_WQKV}
    s_waitcnt lgkmcnt(0)
    """)
    srd(k, 20, 10, WS_END)
    issue_tok_loads(k, XB, 18)
    issue_w_dma(k, 3, 19, 28)
    k.e(f"""
    s_lshl_b32 s30, s16, 6
    s_add_u32 s30, s30, s17
    s_lshl_b32 s31, s30, 11
    s_add_u32 s31, s31, {WS_QF}
    s_lshl_b32 s32, s30, 12
    s_add_u32 s32, s32, {WS_KV}
    s_lshl_b32 s33, s30, 3
    s_add_u32 s33, s33, {WS_KM}
    s_mov_b32 s34, 0
    s_mov_b32 s35, -1
    """)
    A0, A1, A2 = ACC, ACC + 16, ACC + 32
    PK = 192
    T0, T1 = 200, 201
    k.e("s_waitcnt vmcnt(14)\n s_barrier")
    gemm_tile(k, 0, XB, WB, RING, A0)
    k.e("s_waitcnt vmcnt(7)\n s_barrier")
    gemm_tile(k, 1, XB, WB, RING, A1)
    k.e("s_waitcnt vmcnt(0)\n s_barrier")
    gemm_tile(k, 2, XB, WB, RING, A2, swap=True)
    k.e("s_mov_b64 exec, s[34:35]")
    for r in range(12, 16): k.e(f"v_mov_b32 v{A0+r}, 0\n v_mov_b32 v{A1+r}, 0")
    k.e("s_mov_b64 exec, -1")
    k.e(f"v_mov_b32 v{T0}, 0\n v_mov_b32 v{T1}, 0")
    for r in range(16):
        k.e(f"v_mul_f32 v{A0+r}, {f2u(QSCALE):#x}, v{A0+r}")
    for r in range(16):
        k.e(f"v_fmac_f32 v{T0}, v{A0+r}, v{A0+r}")
        k.e(f"v_fmac_f32 v{T1}, v{A1+r}, v{A1+r}")
    halfsum(k, T0, 202); halfsum(k, T1, 203)
    k.e(f"v_sqrt_f32 v{T0}, v{T0}")
    for sh in (8, 4, 2, 1):
        k.e(f"v_max_f32_dpp v{T1}, v{T1}, v{T1} row_ror:{sh} row_mask:0xf bank_mask:0xf")
    k.e(f"v_mul_f32 v{T0}, {f2u(1.02):#x}, v{T0}")
    k.e("s_mov_b64 exec, s[34:35]")
    k.e(f"v_mov_b32 v{A0+12}, v{T0}\n v_mov_b32 v{A1+12}, 1.0\n v_mov_b32 v{A1+13}, 1.0\n v_mov_b32 v{A1+14}, 1.0")
    k.e("s_mov_b64 exec, -1")
    for i in range(8): k.e(f"v_cvt_pk_bf16_f32 v{PK+i}, v{A0+2*i}, v{A0+2*i+1}")
    k.e(f"buffer_store_dwordx4 {vr(PK)}, v2, s[20:23], s31 offen")
    k.e(f"buffer_store_dwordx4 {vr(PK+4)}, v2, s[20:23], s31 offen offset:1024")
    for i in range(8): k.e(f"v_cvt_pk_bf16_f32 v{WB+i}, v{A1+2*i}, v{A1+2*i+1}")
    k.e(f"buffer_store_dwordx4 {vr(WB)}, v2, s[20:23], s32 offen")
    k.e(f"buffer_store_dwordx4 {vr(WB+4)}, v2, s[20:23], s32 offen offset:1024")
    for i in range(8): k.e(f"v_cvt_pk_bf16_f32 v{WB+8+i}, v{A2+2*i}, v{A2+2*i+1}")
    k.e("s_mov_b32 s36, 0xf0000000\n s_mov_b32 s37, 0xf0000000\n s_mov_b64 exec, s[36:37]")
    for i in range(8): k.e(f"v_mov_b32 v{WB+8+i}, 0")
    k.e("s_mov_b32 s36, 0x10000000\n s_mov_b32 s37, 0x10000000\n s_mov_b64 exec, s[36:37]")
    for i in range(8): k.e(f"v_mov_b32 v{WB+8+i}, 0x3f803f80")
    k.e("s_mov_b64 exec, -1")
    k.e(f"buffer_store_dwordx4 {vr(WB+8)}, v2, s[20:23], s32 offen offset:2048")
    k.e(f"buffer_store_dwordx4 {vr(WB+12)}, v2, s[20:23], s32 offen offset:3072")
    k.e(f"v_lshrrev_b32 v4, 2, v0")
    k.e("s_mov_b64 exec, 0x10001")
    k.e(f"buffer_store_dword v{T1}, v4, s[20:23], s33 offen")
    k.label("L_qkv_end")
    k.e("s_endpgm")
    return k, (256, 1, 1), (256, 1, 1), 3 * 28672

def k2_attn():
    k = Kernel("attn_kernel")
    ws_prolog(k, 256, "L_attn_end")
    QB = 8
    OB = 40
    SB = 104
    PB = 136
    KB = 152
    T = 216
    NB = 4
    k.e(f"""
    s_and_b32 s16, s2, 7
    s_lshl_b32 s16, s16, 1
    s_bfe_u32 s17, s2, 0x10003
    s_add_u32 s16, s16, s17
    s_lshr_b32 s17, s2, 4
    s_lshl_b32 s18, s16, 17
    s_lshl_b32 s19, s17, 13
    s_add_u32 s18, s18, s19
    s_add_u32 s18, s18, {WS_QF}
    s_lshl_b32 s19, s16, 18
    s_add_u32 s19, s19, {WS_KV}
    s_lshl_b32 s28, s3, 16
    s_add_u32 s28, s28, s19
    s_lshl_b32 s29, s16, 9
    s_add_u32 s29, s29, {WS_KM}
    v_lshlrev_b32 v3, 3, v0
    s_waitcnt lgkmcnt(0)
    """)
    srd(k, 20, 10, WS_END)
    k.e(f"buffer_load_dwordx2 v[{T}:{T+1}], v3, s[20:23], s29 offen")
    for q in range(4):
        if q == 2: k.e("s_add_u32 s30, s18, 4096")
        so = "s18" if q < 2 else "s30"
        k.e(f"buffer_load_dwordx4 {vr(QB+8*q)}, v2, s[20:23], {so} offen offset:{(q%2)*2048}")
        k.e(f"buffer_load_dwordx4 {vr(QB+8*q+4)}, v2, s[20:23], {so} offen offset:{(q%2)*2048+1024}")
    def ldkv(b, sr="s[24:27]"):
        for i in range(4):
            k.e(f"buffer_load_dwordx4 {vr(KB+16*b+4*i)}, v2, {sr}, s28 offen offset:{i*1024}")
        k.e("s_add_u32 s28, s28, 4096")
    k.e("s_mov_b32 s24, s10\n s_mov_b32 s25, s11\n s_add_u32 s26, s28, 0x10000\n s_mov_b32 s27, 0x00020000")
    for b in range(NB): ldkv(b)
    for r in range(64): k.e(f"v_mov_b32 v{OB+r}, 0")
    k.e(f"s_waitcnt vmcnt({8 + 4*NB})")
    k.e(f"v_max_f32 v{T}, v{T}, v{T+1}")
    for sh in (8, 4, 2, 1):
        k.e(f"v_max_f32_dpp v{T}, v{T}, v{T} row_ror:{sh} row_mask:0xf bank_mask:0xf")
    k.e(f"v_mov_b32 v{T+1}, v{T}\n v_permlane16_swap_b32 v{T+1}, v{T}\n v_max_f32 v{T}, v{T}, v{T+1}")
    k.e(f"v_mov_b32 v{T+1}, v{T}\n v_permlane32_swap_b32 v{T+1}, v{T}\n v_max_f32 v{T}, v{T}, v{T+1}")
    k.e(f"v_sqrt_f32 v{T}, v{T}")
    k.e(f"v_mul_f32 v{T}, {f2u(-1.02):#x}, v{T}")
    k.e(f"s_waitcnt vmcnt({4*NB})")
    k.e("s_mov_b32 s34, 0\n s_mov_b32 s35, -1\n s_mov_b64 exec, s[34:35]")
    for q in range(4):
        r = QB + 8*q + 6
        k.e(f"v_lshlrev_b32 v{T+1}, 16, v{r}")
        k.e(f"v_mul_f32 v{T+1}, v{T+1}, v{T}")
        k.e(f"v_cvt_pk_bf16_f32 v{r}, v{T+1}, 0")
    k.e("s_mov_b64 exec, -1")
    def qk(b, q, s):
        mf1 = f"v_mfma_f32_32x32x16_bf16 {vr(SB+16*s,16)}, {vr(KB+16*b)}, {vr(QB+8*q)}, 0"
        mf2 = f"v_mfma_f32_32x32x16_bf16 {vr(SB+16*s,16)}, {vr(KB+16*b+4)}, {vr(QB+8*q+4)}, {vr(SB+16*s,16)}"
        return mf1, mf2
    def pv(b, q, p):
        mf1 = f"v_mfma_f32_32x32x16_bf16 {vr(OB+16*q,16)}, {vr(KB+16*b+8)}, {vr(PB+8*p)}, {vr(OB+16*q,16)}"
        mf2 = f"v_mfma_f32_32x32x16_bf16 {vr(OB+16*q,16)}, {vr(KB+16*b+12)}, {vr(PB+8*p+4)}, {vr(OB+16*q,16)}"
        return mf1, mf2
    k.e(f"s_waitcnt vmcnt({4*(NB-1)})")
    for m in qk(0, 0, 0): k.e(m)
    k.e("s_mov_b32 s31, 0")
    k.label("L_attn_loop")
    for b in range(NB):
        for q in range(4):
            i = b * 4 + q
            s, p = i % 2, i % 2
            nb_, nq = (b, q + 1) if q < 3 else ((b + 1) % NB, 0)
            if q == 0:
                pass
            if q == 3:
                k.e(f"s_waitcnt vmcnt({4*(NB-2)})")
            q1, q2 = qk(nb_, nq, 1 - s)
            pb_, pq, pp = (b, q - 1, 1 - p) if q > 0 else ((b - 1) % NB, 3, 1 - p)
            E = lambda r: f"v_exp_f32 v{SB+16*s+r}, v{SB+16*s+r}"
            C = lambda j: f"v_cvt_pk_bf16_f32 v{PB+8*p+j}, v{SB+16*s+2*j}, v{SB+16*s+2*j+1}"
            p1, p2 = pv(b, q, p)
            seq = [q1, E(0), E(1), E(2), E(3), E(4), C(0), q2, E(5), E(6), C(1), E(7), E(8), C(2), E(9), C(3),
                   p1, E(10), E(11), C(4), E(12), E(13), C(5), E(14), E(15), C(6), C(7), p2]
            for x in seq: k.e(x)
            if q == 3:
                ldkv(b)
    k.e("s_add_u32 s31, s31, 1\n s_cmp_lt_u32 s31, 4\n s_cbranch_scc1 L_attn_loop")
    k.e("s_waitcnt vmcnt(0)")
    k.e("s_lshl_b32 s36, s3, 12\n v_add_u32 v4, s36, v2")
    for q in range(4):
        for i in range(4):
            k.e(f"ds_write_b128 v4, {vr(OB+16*q+4*i)} offset:{q*16384+i*1024}")
    k.e("s_lshl_b32 s36, s3, 14\n v_add_u32 v5, s36, v2")
    k.e("s_waitcnt lgkmcnt(0)\n s_barrier")
    for src in range(4):
        for i in range(4):
            k.e(f"ds_read_b128 {vr(OB+16*src+4*i)}, v5 offset:{src*4096+i*1024}")
    k.e("s_waitcnt lgkmcnt(8)")
    for r in range(16): k.e(f"v_add_f32 v{OB+r}, v{OB+r}, v{OB+16+r}")
    k.e("s_waitcnt lgkmcnt(0)")
    for r in range(16): k.e(f"v_add_f32 v{OB+32+r}, v{OB+32+r}, v{OB+48+r}")
    for r in range(16): k.e(f"v_add_f32 v{OB+r}, v{OB+r}, v{OB+32+r}")
    k.label("L_attn_fin")
    k.e(f"v_mov_b32 v{T}, v{OB+12}\n v_mov_b32 v{T+1}, v{OB+12}\n v_permlane32_swap_b32 v{T+1}, v{T}")
    k.e(f"v_mov_b32 v{T+2}, {f2u(2.0**-90):#x}")
    k.e(f"v_cmp_nge_f32 vcc, v{T}, v{T+2}")
    k.e(f"v_rcp_f32 v{T}, v{T}")
    k.e("s_cbranch_vccnz L_attn_slow")
    k.label("L_attn_store")
    for r in range(16): k.e(f"v_mul_f32 v{OB+r}, v{OB+r}, v{T}")
    for i in range(8): k.e(f"v_cvt_pk_bf16_f32 v{PB+i}, v{OB+2*i}, v{OB+2*i+1}")
    k.e(f"""
    s_lshl_b32 s36, s17, 2
    s_add_u32 s36, s36, s3
    s_lshl_b32 s36, s36, 15
    s_lshl_b32 s37, s16, 11
    s_add_u32 s36, s36, s37
    s_add_u32 s36, s36, {WS_OF}
    buffer_store_dwordx4 {vr(PB)}, v2, s[20:23], s36 offen
    buffer_store_dwordx4 {vr(PB+4)}, v2, s[20:23], s36 offen offset:1024
    """)
    k.label("L_attn_end")
    k.e("s_endpgm")
    k.label("L_attn_slow")
    k.e(f"""
    s_lshl_b32 s36, s3, 11
    s_add_u32 s36, s36, s18
    buffer_load_dwordx4 {vr(QB)}, v2, s[20:23], s36 offen
    buffer_load_dwordx4 {vr(QB+4)}, v2, s[20:23], s36 offen offset:1024
    v_mov_b32 v{T+4}, 0xff7fffff
    s_mov_b32 s28, s19
    s_mov_b32 s31, 0
    s_waitcnt vmcnt(0)
    s_mov_b64 exec, s[34:35]
    v_mov_b32 v{QB+6}, 0
    v_mov_b32 v{QB+7}, 0
    s_mov_b64 exec, -1
    """)
    k.label("L_attn_p1")
    k.e(f"""
    buffer_load_dwordx4 {vr(KB)}, v2, s[20:23], s28 offen
    buffer_load_dwordx4 {vr(KB+4)}, v2, s[20:23], s28 offen offset:1024
    s_add_u32 s28, s28, 4096
    s_waitcnt vmcnt(0)
    """)
    for m in qk(0, 0, 0): k.e(m)
    for r in range(16): k.e(f"v_max_f32 v{T+4}, v{T+4}, v{SB+r}")
    k.e("s_add_u32 s31, s31, 1\n s_cmp_lt_u32 s31, 64\n s_cbranch_scc1 L_attn_p1")
    k.e(f"v_mov_b32 v{T+1}, v{T+4}\n v_permlane32_swap_b32 v{T+1}, v{T+4}\n v_max_f32 v{T+4}, v{T+4}, v{T+1}")
    k.e(f"""
    v_sub_f32 v{T+4}, 0, v{T+4}
    v_and_b32 v{T+5}, 0xffff0000, v{T+4}
    v_sub_f32 v{T+4}, v{T+4}, v{T+5}
    v_and_b32 v{T+6}, 0xffff0000, v{T+4}
    v_sub_f32 v{T+4}, v{T+4}, v{T+6}
    v_lshrrev_b32 v{T+5}, 16, v{T+5}
    v_or_b32 v{T+5}, v{T+5}, v{T+6}
    v_lshrrev_b32 v{T+4}, 16, v{T+4}
    s_mov_b64 exec, s[34:35]
    v_mov_b32 v{QB+6}, v{T+5}
    v_mov_b32 v{QB+7}, v{T+4}
    s_mov_b64 exec, -1
    s_mov_b32 s28, s19
    s_mov_b32 s31, 0
    """)
    for r in range(16): k.e(f"v_mov_b32 v{OB+r}, 0")
    k.label("L_attn_p2")
    ldkv(0, "s[20:23]")
    k.e("s_waitcnt vmcnt(0)")
    for m in qk(0, 0, 0): k.e(m)
    for r in range(16): k.e(f"v_exp_f32 v{SB+r}, v{SB+r}")
    for j in range(8): k.e(f"v_cvt_pk_bf16_f32 v{PB+j}, v{SB+2*j}, v{SB+2*j+1}")
    for m in pv(0, 0, 0): k.e(m)
    k.e("s_add_u32 s31, s31, 1\n s_cmp_lt_u32 s31, 64\n s_cbranch_scc1 L_attn_p2")
    k.e(f"v_mov_b32 v{T}, v{OB+12}\n v_mov_b32 v{T+1}, v{OB+12}\n v_permlane32_swap_b32 v{T+1}, v{T}")
    k.e(f"v_rcp_f32 v{T}, v{T}")
    k.e("s_branch L_attn_store")
    return k, (256, 1, 1), (256, 1, 1), 65536

def splitk_gemm(name, KS, w_off, a_off, epi, DEPTH):
    k = Kernel(name)
    end = f"L_{name}_end"
    ws_prolog(k, 224, end)
    kw = KS // 4
    ACC = 8
    LB = 72
    k.e(f"""
    s_load_dwordx2 s[4:5], s[0:1], {A_X}
    s_load_dwordx2 s[6:7], s[0:1], {A_OUT}
    s_and_b32 s16, s2, 7
    s_lshr_b32 s17, s2, 3
    s_mul_i32 s18, s17, 37
    s_lshr_b32 s18, s18, 8
    s_mul_i32 s19, s18, 7
    s_sub_u32 s17, s17, s19
    s_lshl_b32 s16, s16, 2
    s_add_u32 s16, s16, s18
    s_mul_i32 s28, s17, {2*KS*1024}
    s_mul_i32 s30, s3, {kw*1024}
    s_add_u32 s28, s28, s30
    s_add_u32 s28, s28, {w_off}
    s_add_u32 s29, s28, {KS*1024}
    s_mul_i32 s31, s16, {2*KS*1024}
    s_add_u32 s30, s30, s31
    s_add_u32 s30, s30, {a_off}
    s_add_u32 s31, s30, {KS*1024}
    s_waitcnt lgkmcnt(0)
    """)
    srd(k, 20, 10, WS_END)
    def ld(ks):
        b = LB + 16 * (ks % DEPTH)
        if ks and ks % 4 == 0:
            for s in (28, 29, 30, 31): k.e(f"s_add_u32 s{s}, s{s}, 4096")
        for i, s in enumerate((28, 29, 30, 31)):
            k.e(f"buffer_load_dwordx4 {vr(b+4*i)}, v2, s[20:23], s{s} offen offset:{(ks%4)*1024}")
    npre = min(DEPTH - 1, kw) if kw >= DEPTH else kw
    extra = epi(k, 'prefetch')
    for ks in range(npre): ld(ks)
    issued = npre
    for ks in range(kw):
        if issued < kw:
            ld(issued); issued += 1
        k.e(f"s_waitcnt vmcnt({4*(issued-ks-1)})")
        b = LB + 16 * (ks % DEPTH)
        for ft in range(2):
            for tt in range(2):
                mfma(k, ACC + 16*(ft*2+tt), b + 4*ft, b + 8 + 4*tt, "0" if ks == 0 else None)
    k.e("s_lshl_b32 s36, s3, 12\n v_add_u32 v4, s36, v2")
    for t in range(4):
        for i in range(4):
            k.e(f"ds_write_b128 v4, {vr(ACC+16*t+4*i)} offset:{t*16384+i*1024}")
    k.e("s_lshl_b32 s36, s3, 14\n v_add_u32 v5, s36, v2")
    k.e("s_waitcnt lgkmcnt(0)\n s_barrier")
    for src in range(4):
        for i in range(4):
            k.e(f"ds_read_b128 {vr(ACC+16*src+4*i)}, v5 offset:{src*4096+i*1024}")
    k.e("s_waitcnt lgkmcnt(8)")
    for r in range(16): k.e(f"v_add_f32 v{ACC+r}, v{ACC+r}, v{ACC+16+r}")
    k.e("s_waitcnt lgkmcnt(0)")
    for r in range(16): k.e(f"v_add_f32 v{ACC+32+r}, v{ACC+32+r}, v{ACC+48+r}")
    for r in range(16): k.e(f"v_add_f32 v{ACC+r}, v{ACC+r}, v{ACC+32+r}")
    epi(k, 'final')
    k.label(end)
    k.e("s_endpgm")
    return k, (224, 1, 1), (256, 1, 1), 65536

def tile_ids(k):
    k.e(f"""
    s_lshr_b32 s32, s3, 1
    s_lshl_b32 s34, s17, 1
    s_add_u32 s32, s32, s34
    s_and_b32 s33, s3, 1
    s_lshl_b32 s34, s16, 1
    s_add_u32 s33, s33, s34
    """)

def k3_wo():
    ACC, R = 8, 240
    def epi(k, what):
        if what == 'prefetch':
            tile_ids(k)
            srd(k, 24, 4, S * D * 2)
            k.e(f"""
            v_and_b32 v6, 31, v0
            v_lshrrev_b32 v7, 5, v0
            v_mul_u32_u24 v3, {D*2}, v6
            v_lshl_add_u32 v3, v7, 3, v3
            s_mul_i32 s34, s33, {32*D*2}
            s_lshl_b32 s35, s32, 6
            s_add_u32 s34, s34, s35
            """)
            for i in range(4):
                k.e(f"buffer_load_dwordx2 v[{R+2*i}:{R+2*i+1}], v3, s[24:27], s34 offen offset:{16*i}")
            return 4
        for i in range(8):
            k.e(f"v_lshlrev_b32 v{ACC+16}, 16, v{R+i}")
            k.e(f"v_and_b32 v{ACC+17}, 0xffff0000, v{R+i}")
            k.e(f"v_add_f32 v{ACC+2*i}, v{ACC+2*i}, v{ACC+16}")
            k.e(f"v_add_f32 v{ACC+2*i+1}, v{ACC+2*i+1}, v{ACC+17}")
        for i in range(8): k.e(f"v_cvt_pk_bf16_f32 v{R+i}, v{ACC+2*i}, v{ACC+2*i+1}")
        k.e(f"""
        s_mul_i32 s34, s33, {28*1024}
        s_lshl_b32 s35, s32, 11
        s_add_u32 s34, s34, s35
        s_add_u32 s34, s34, {WS_HF}
        buffer_store_dwordx4 {vr(R)}, v2, s[20:23], s34 offen
        buffer_store_dwordx4 {vr(R+4)}, v2, s[20:23], s34 offen offset:1024
        v_mov_b32 v{ACC+18}, 0
        v_mov_b32 v{ACC+19}, 0
        v_mov_b32 v{ACC+20}, 0x3f803f80
        """)
        for i in range(8):
            k.e(f"v_dot2c_f32_bf16 v{ACC+18}, v{R+i}, v{ACC+20}")
            k.e(f"v_dot2c_f32_bf16 v{ACC+19}, v{R+i}, v{R+i}")
        halfsum(k, ACC+18, ACC+21); halfsum(k, ACC+19, ACC+22)
        k.e(f"""
        s_cmp_ge_u32 s32, 7
        s_cselect_b32 s35, 8, 0
        s_lshl_b32 s34, s32, 3
        s_add_u32 s34, s34, s35
        s_lshl_b32 s35, s33, 12
        s_add_u32 s34, s34, s35
        s_add_u32 s34, s34, {WS_ST}
        v_lshlrev_b32 v6, 7, v6
        s_mov_b64 exec, 0xffffffff
        buffer_store_dwordx2 v[{ACC+18}:{ACC+19}], v6, s[20:23], s34 offen
        """)
    return splitk_gemm("wo_kernel", 32, WS_WO, WS_OF, epi, 8)

def k5_w2():
    ACC, R = 8, 240
    def epi(k, what):
        if what == 'prefetch':
            tile_ids(k)
            srd(k, 24, 6, S * D * 2)
            k.e(f"""
            s_mul_i32 s34, s33, {28*1024}
            s_lshl_b32 s35, s32, 11
            s_add_u32 s34, s34, s35
            s_add_u32 s34, s34, {WS_HF}
            buffer_load_dwordx4 {vr(R)}, v2, s[20:23], s34 offen
            buffer_load_dwordx4 {vr(R+4)}, v2, s[20:23], s34 offen offset:1024
            v_and_b32 v6, 31, v0
            v_lshrrev_b32 v7, 5, v0
            v_mul_u32_u24 v3, {D*2}, v6
            v_lshl_add_u32 v3, v7, 4, v3
            s_mul_i32 s34, s33, {32*D*2}
            s_lshl_b32 s35, s32, 6
            s_add_u32 s34, s34, s35
            """)
            return 2
        for i in range(8):
            k.e(f"v_lshlrev_b32 v{ACC+16}, 16, v{R+i}")
            k.e(f"v_and_b32 v{ACC+17}, 0xffff0000, v{R+i}")
            k.e(f"v_add_f32 v{ACC+2*i}, v{ACC+2*i}, v{ACC+16}")
            k.e(f"v_add_f32 v{ACC+2*i+1}, v{ACC+2*i+1}, v{ACC+17}")
        for i in range(8): k.e(f"v_cvt_pk_bf16_f32 v{R+i}, v{ACC+2*i}, v{ACC+2*i+1}")
        k.e(f"v_permlane32_swap_b32 v{R}, v{R+2}\n v_permlane32_swap_b32 v{R+1}, v{R+3}")
        k.e(f"v_permlane32_swap_b32 v{R+4}, v{R+6}\n v_permlane32_swap_b32 v{R+5}, v{R+7}")
        k.e(f"buffer_store_dwordx4 {vr(R)}, v3, s[24:27], s34 offen")
        k.e(f"buffer_store_dwordx4 {vr(R+4)}, v3, s[24:27], s34 offen offset:32")
    return splitk_gemm("w2_kernel", 112, WS_W2, WS_H1, epi, 10)

def k4_w1():
    k = Kernel("w1_kernel")
    ws_prolog(k, 224, "L_w1_end")
    XB, WB, RING, ACC = 8, 120, 6, 144
    CS = 176
    ST = 192
    PK = 208
    T = 216
    LCS = 4 * 28672
    k.e(f"""
    s_and_b32 s16, s2, 7
    s_lshr_b32 s17, s2, 3
    s_cmp_ge_u32 s17, 14
    s_cselect_b32 s18, 1, 0
    s_cselect_b32 s19, 14, 0
    s_sub_u32 s17, s17, s19
    s_lshl_b32 s16, s16, 1
    s_add_u32 s16, s16, s18
    s_lshl_b32 s16, s16, 2
    s_add_u32 s16, s16, s3
    v_add_u32 v3, 0x10000, v2
    s_mul_i32 s18, s16, 28672
    s_add_u32 s18, s18, {WS_HF}
    s_mul_i32 s19, s17, {4*28672}
    s_mul_i32 s28, s3, 7168
    s_add_u32 s19, s19, s28
    s_add_u32 s19, s19, {WS_W1}
    s_lshl_b32 s29, s16, 12
    s_add_u32 s29, s29, {WS_ST}
    s_lshl_b32 s30, s17, 9
    s_lshl_b32 s31, s3, 7
    s_add_u32 s30, s30, s31
    s_add_u32 s30, s30, {WS_CS1}
    v_and_b32 v6, 31, v0
    v_lshrrev_b32 v7, 5, v0
    v_lshlrev_b32 v4, 7, v6
    v_lshl_add_u32 v4, v7, 6, v4
    v_lshlrev_b32 v5, 2, v6
    v_mul_u32_u24 v1, {2*F*4}, v7
    v_add_u32 v1, v1, v5
    s_waitcnt lgkmcnt(0)
    """)
    srd(k, 20, 10, WS_END)
    for i in range(4):
        k.e(f"buffer_load_dwordx4 {vr(ST+4*i)}, v4, s[20:23], s29 offen offset:{16*i}")
    k.e(f"buffer_load_dword v{T}, v1, s[20:23], s30 offen")
    k.e(f"s_add_u32 s30, s30, {F*4}")
    k.e(f"buffer_load_dword v{T+1}, v1, s[20:23], s30 offen")
    issue_tok_loads(k, XB, 18)
    issue_w_dma(k, 4, 19, 28)
    k.e("s_waitcnt vmcnt(56)")
    k.e(f"v_add_f32 v{T}, v{T}, v{T+1}")
    halfsum(k, T, T+1)
    k.e(f"s_lshl_b32 s31, s3, 7\n s_add_u32 s31, s31, {LCS}\n v_add_u32 v5, s31, v5")
    k.e(f"ds_write_b32 v5, v{T}")
    for i in range(1, 7):
        k.e(f"v_add_f32 v{ST}, v{ST}, v{ST+2*i}\n v_add_f32 v{ST+1}, v{ST+1}, v{ST+2*i+1}")
    halfsum(k, ST, T+1); halfsum(k, ST+1, T+2)
    MEAN, RSTD, NRL = ST, ST+1, ST+2
    k.e(f"""
    v_mul_f32 v{ST}, {f2u(1.0/D):#x}, v{ST}
    v_mul_f32 v{ST+1}, {f2u(1.0/D):#x}, v{ST+1}
    v_fma_f32 v{ST+1}, -v{ST}, v{ST}, v{ST+1}
    v_max_f32 v{ST+1}, 0, v{ST+1}
    v_add_f32 v{ST+1}, {f2u(1e-5):#x}, v{ST+1}
    v_rsq_f32 v{ST+1}, v{ST+1}
    v_mul_f32 v{NRL}, {f2u(-math.log2(math.e)):#x}, v{ST+1}
    v_lshlrev_b32 v7, 4, v7
    v_add_u32 v7, {LCS}, v7
    s_mul_i32 s32, s16, {112*1024}
    s_lshl_b32 s33, s17, 13
    s_add_u32 s32, s32, s33
    s_add_u32 s32, s32, {WS_H1}
    """)
    def epilogue(f):
        a = ACC + 16 * (f % 2)
        L = []
        for i in range(4): L.append(f"ds_read_b128 {vr(CS+4*i)}, v7 offset:{f*128+i*32}")
        return L
    def epi_math(f):
        a = ACC + 16 * (f % 2)
        L = []
        for r in range(16):
            t0, t1 = T + 2 + (r % 2) * 2, T + 3 + (r % 2) * 2
            L.append(f"v_fma_f32 v{a+r}, -v{MEAN}, v{CS+r}, v{a+r}")
            L.append(f"v_mul_f32 v{t0}, v{a+r}, v{NRL}")
            L.append(f"v_exp_f32 v{t0}, v{t0}")
            L.append(f"v_mul_f32 v{a+r}, v{a+r}, v{RSTD}")
            L.append(f"v_add_f32 v{t0}, 1.0, v{t0}")
            L.append(f"v_rcp_f32 v{t0}, v{t0}")
            L.append(f"s_nop 0")
            L.append(f"v_mul_f32 v{a+r}, v{a+r}, v{t0}")
            if r % 2 == 1: L.append(f"v_cvt_pk_bf16_f32 v{PK+r//2}, v{a+r-1}, v{a+r}")
        so = (f % 2) * 2048
        if f == 2: L.append("s_add_u32 s32, s32, 4096")
        L.append(f"buffer_store_dwordx4 {vr(PK)}, v2, s[20:23], s32 offen offset:{so}")
        L.append(f"buffer_store_dwordx4 {vr(PK+4)}, v2, s[20:23], s32 offen offset:{so+1024}")
        return L
    nst = 0
    for f in range(4):
        k.e(f"s_waitcnt vmcnt({7*(3-f) + nst}) lgkmcnt(0)\n s_barrier")
        if f > 0:
            gemm_tile(k, f, XB, WB, RING, ACC + 16*(f % 2), filler=epi_math(f - 1))
            nst += 2
        else:
            gemm_tile(k, f, XB, WB, RING, ACC + 16*(f % 2))
        for x in epilogue(f): k.e(x)
    k.e("s_waitcnt lgkmcnt(0)")
    for x in epi_math(3): k.e(x)
    k.label("L_w1_end")
    k.e("s_endpgm")
    return k, (224, 1, 1), (256, 1, 1), LCS + 512

HEADER = open('sequential_preLN__mha_block__dense_activation_silu__prompt.s.ref').read().split('\n')
HEADER = [l for l in HEADER if l.startswith(';') and '@launch' not in l and 'Override' not in l and 'grid=ceil' not in l]

def main(out):
    ks = [k0_prep(), k1_qkv(), k2_attn(), k3_wo(), k4_w1(), k5_w2()]
    launches = [(k.name, g, b, lds) for (k, g, b, lds) in ks]
    txt = build_file(HEADER, launches, [k for (k, _, _, _) in ks], verbose='-v' in sys.argv)
    open(out, 'w').write(txt)

if __name__ == '__main__':
    main(sys.argv[1] if len(sys.argv) > 1 and not sys.argv[1].startswith('-') else
         'sequential_preLN__mha_block__dense_activation_silu__prompt.s')
```

```python
import re

def _regs(tok):
    tok = tok.strip()
    tok = re.sub(r'^-', '', tok)
    m = re.match(r'^abs\((.*)\)$', tok)
    if m: tok = m.group(1)
    tok = tok.strip('|')
    m = re.match(r'^([vsa])(\d+)$', tok)
    if m: return [(m.group(1), int(m.group(2)))]
    m = re.match(r'^([vsa])\[(\d+):(\d+)\]$', tok)
    if m: return [(m.group(1), i) for i in range(int(m.group(2)), int(m.group(3)) + 1)]
    if tok in ('vcc', 'vcc_lo', 'vcc_hi'): return [('x', 'vcc')]
    if tok in ('exec', 'exec_lo', 'exec_hi'): return [('x', 'exec')]
    if tok == 'm0': return [('x', 'm0')]
    return []

def _split_ops(s):
    out, depth, cur = [], 0, ''
    for ch in s:
        if ch in '[(': depth += 1
        if ch in '])': depth -= 1
        if ch == ',' and depth == 0:
            out.append(cur.strip()); cur = ''
        else: cur += ch
    if cur.strip(): out.append(cur.strip())
    return out

TRANS = ('v_exp_f32', 'v_log_f32', 'v_rcp_f32', 'v_rsq_f32', 'v_sqrt_f32', 'v_sin_f32', 'v_cos_f32',
         'v_exp_f16', 'v_rcp_f16', 'v_rcp_iflag_f32')

class Ins:
    __slots__ = ('text', 'mn', 'kind', 'w', 'r', 'passes', 'srcc', 'srcab', 'wide_store', 'dpp', 'sdwa', 'lds_dma',
                 'nop', 'label', 'target', 'vm', 'lgkm', 'dst_load', 'comment')
    def __init__(self, text):
        self.text = text
        self.w, self.r = [], []
        self.passes = 0; self.srcc = []; self.srcab = []; self.wide_store = []
        self.dpp = False; self.sdwa = False; self.lds_dma = False; self.nop = 1
        self.label = None; self.target = None; self.vm = 0; self.lgkm = 0; self.dst_load = []
        t = text.split(';')[0].strip()
        if t.endswith(':'):
            self.kind = 'label'; self.label = t[:-1]; self.mn = ''; self.nop = 0; return
        if t.startswith('.') or not t:
            self.kind = 'dir'; self.mn = ''; self.nop = 0; return
        parts = t.split(None, 1)
        mn = parts[0]; self.mn = mn
        rest = parts[1] if len(parts) > 1 else ''
        ops = _split_ops(rest)
        mods = ''
        if ops:
            lp = ops[-1].split(None, 1)
            if len(lp) > 1:
                ops[-1] = lp[0]; mods = lp[1]
        base = re.sub(r'_(e32|e64|dpp|sdwa)$', '', mn)
        R = lambda i: _regs(ops[i]) if i < len(ops) else []
        allr = lambda lo: [x for i in range(lo, len(ops)) for x in R(i)]
        if 'row_' in mods or 'quad_perm' in mods or 'wave_' in mods or mn.endswith('_dpp') or 'row_' in rest:
            self.dpp = True
        if mn.endswith('_sdwa') or 'dst_sel' in mods or 'dst_sel' in rest: self.sdwa = True
        if mn == 's_nop':
            self.kind = 'nop'; self.nop = int(ops[0], 0) + 1
        elif mn == 's_waitcnt':
            self.kind = 'wait'
        elif mn in ('s_barrier', 's_endpgm', 's_setprio', 's_sleep', 's_sethalt', 's_setkill'):
            self.kind = 'misc'
        elif mn.startswith('s_cbranch') or mn == 's_branch':
            self.kind = 'branch'; self.target = ops[0]
            if 'vcc' in mn: self.r = [('x', 'vcc')]
            if 'exec' in mn: self.r = [('x', 'exec')]
        elif mn.startswith('s_load') or mn.startswith('s_buffer_load') or mn in ('s_memtime', 's_memrealtime'):
            self.kind = 'smem'; self.w = R(0); self.r = allr(1); self.lgkm = 1; self.dst_load = R(0)
        elif mn.startswith('s_cmp') or mn.startswith('s_bitcmp'):
            self.kind = 'salu'; self.r = allr(0)
        elif mn.startswith('s_'):
            self.kind = 'salu'; self.w = R(0); self.r = allr(1)
            if 'saveexec' in mn: self.w += [('x', 'exec')]; self.r += [('x', 'exec')]
            if mn in ('s_addk_i32', 's_mulk_i32'): self.r += R(0)
        elif mn.startswith('v_mfma'):
            self.kind = 'mfma'; self.w = R(0); self.srcab = R(1) + R(2); self.srcc = R(3); self.r = self.srcab + self.srcc
            if '32x32x16' in mn or '32x32x8' in mn: self.passes = 8
            elif '16x16x32' in mn or '16x16x16' in mn: self.passes = 4
            else: raise ValueError(mn)
        elif mn.startswith('buffer_') or mn.startswith('global_'):
            self.kind = 'vmem'; self.vm = 1
            islds = re.search(r'\blds\b', mods) is not None or '_lds_' in mn
            if mn in ('buffer_wbl2', 'buffer_inv'):
                pass
            elif islds:
                self.lds_dma = True; self.r = allr(0) + [('x', 'm0')]
            elif 'load' in mn:
                self.w = R(0); self.r = allr(1); self.dst_load = R(0)
                if 'd16' in mn: self.r += []
            elif 'store' in mn:
                self.r = allr(0)
                data = R(0) if mn.startswith('buffer_') else R(1)
                if len(data) >= 3: self.wide_store = data
            elif 'atomic' in mn:
                self.r = allr(0)
                if re.search(r'\bsc0\b', mods):
                    self.w = R(0); self.dst_load = R(0)
            else: raise ValueError(mn)
        elif mn.startswith('ds_'):
            self.kind = 'ds'; self.lgkm = 1
            if 'read' in mn or 'permute' in mn or 'swizzle' in mn or 'rtn' in mn:
                self.w = R(0); self.r = allr(1); self.dst_load = R(0)
            else:
                self.r = allr(0)
        elif mn.startswith('v_'):
            self.kind = 'valu'
            if base.startswith('v_cmp'):
                self.w = R(0); self.r = allr(1)
                if base.startswith('v_cmpx'): self.w += [('x', 'exec')]
            elif base.startswith('v_permlane') and 'swap' in base:
                self.w = R(0) + R(1); self.r = R(0) + R(1)
            elif base in ('v_add_co_u32', 'v_sub_co_u32', 'v_addc_co_u32', 'v_subb_co_u32', 'v_subrev_co_u32'):
                self.w = R(0) + R(1); self.r = allr(2)
            elif base == 'v_nop':
                pass
            else:
                self.w = R(0); self.r = allr(1)
                if base in ('v_fmac_f32', 'v_dot2c_f32_bf16', 'v_dot2c_f32_f16', 'v_pk_fmac_f16', 'v_writelane_b32') or 'UNUSED_PRESERVE' in rest:
                    self.r += R(0)
                if self.dpp: self.r += R(0)
                if base == 'v_cndmask_b32' and len(ops) == 3: self.r += [('x', 'vcc')]
        else:
            raise ValueError('unknown instruction: ' + text)
        self.mn = base if self.kind in ('valu',) else mn

def _ov(a, b):
    return bool(set(a) & set(b))

def need_states(p, c):
    n = 0
    pv = [x for x in p.w if x[0] in 'va']
    ps = [x for x in p.w if x[0] == 's' or x == ('x', 'vcc')]
    if p.kind == 'valu':
        if c.kind == 'mfma' and _ov(pv, c.r): n = max(n, 2)
        if c.kind == 'valu':
            if p.mn in TRANS and c.mn not in TRANS and _ov(pv, c.r): n = max(n, 1)
            if p.mn in TRANS and c.mn in TRANS and _ov(pv, c.r): n = max(n, 1)
            if c.dpp and _ov(pv, c.r): n = max(n, 2)
            if c.mn.startswith('v_permlane') and _ov(pv, c.r): n = max(n, 2)
            if c.mn in ('v_readlane_b32', 'v_readfirstlane_b32') and _ov(pv, c.r): n = max(n, 1)
            if _ov(ps, c.r):
                n = max(n, 4 if c.mn in ('v_readlane_b32', 'v_writelane_b32') else 2)
            if p.sdwa and (_ov(pv, c.r) or _ov(pv, c.w)): n = max(n, 1)
            if p.mn.startswith('v_dot') and (_ov(pv, c.r) or _ov(pv, c.w)):
                if not (c.mn == p.mn and _ov(pv, c.w)): n = max(n, 3)
            if ('x', 'exec') in p.w:
                n = max(n, 5 if c.dpp else 4 if ('lane' in c.mn) else 0)
        if c.kind == 'vmem' and _ov(ps, c.r): n = max(n, 5)
        if c.kind in ('salu', 'smem', 'branch') and _ov(ps, c.r): n = max(n, 5 if c.kind == 'branch' else 2)
        if ('x', 'exec') in p.w and c.kind == 'mfma': n = max(n, 4)
        if p.mn.startswith('v_dot') and c.kind in ('vmem', 'ds', 'mfma') and _ov(pv, c.r): n = max(n, 3)
    if p.kind == 'mfma':
        t_ab = {4: 8, 8: 12}[p.passes]; t_c = {4: 6, 8: 10}[p.passes]; t_war = {4: 3, 8: 7}[p.passes]
        if c.kind == 'mfma':
            if _ov(p.w, c.srcab): n = max(n, t_ab)
            if _ov(p.w, c.srcc) and not (p.w == c.srcc and p.passes == c.passes): n = max(n, t_c)
            if _ov(p.w, c.w) and not (p.w == c.w and p.passes == c.passes): n = max(n, t_c)
        elif c.kind in ('valu', 'vmem', 'ds'):
            if _ov(p.w, c.r) or _ov(p.w, c.w): n = max(n, t_ab)
            if c.kind == 'valu' and _ov(p.srcc, c.w): n = max(n, t_war)
            if c.kind in ('vmem', 'ds') and _ov(p.srcc, c.w): n = max(n, t_war)
    if p.kind == 'salu':
        if ('x', 'm0') in p.w and (c.lds_dma or 'addtid' in c.mn): n = max(n, 1)
    if p.wide_store:
        if c.kind == 'valu' and _ov(p.wide_store, c.w): n = max(n, 2)
        elif _ov(p.wide_store, c.w): n = max(n, 1)
    return n

class Kernel:
    def __init__(self, name):
        self.name = name
        self.ins = []
        self.maxv = 0; self.maxs = 0; self.maxa = -1
        self.uid = 0
    def e(self, text):
        for line in text.split('\n'):
            line = line.strip()
            if not line or line.startswith(';'): continue
            self.ins.append(Ins(line))
    def label(self, l): self.e(l + ':')
    def newlabel(self, p='L'):
        self.uid += 1
        return f'{p}_{self.name}_{self.uid}'

    def fix_hazards(self, verbose=False):
        LOOK = 14
        changed = True; total = 0
        while changed:
            changed = False
            ins = self.ins
            labels = {x.label: i for i, x in enumerate(ins) if x.kind == 'label'}
            srcs = {}
            for i, x in enumerate(ins):
                if x.kind == 'branch' and x.target in labels:
                    srcs.setdefault(labels[x.target], []).append(i)
            for i, c in enumerate(ins):
                if c.kind in ('label', 'dir', 'nop', 'wait', 'misc'): continue
                worst = 0
                stack = [(i - 1, 0)]
                seen = set()
                while stack:
                    j, d = stack.pop()
                    while j >= 0 and d < LOOK:
                        if (j, d) in seen: break
                        seen.add((j, d))
                        p = ins[j]
                        if p.kind == 'label':
                            for s in srcs.get(j, []): stack.append((s, d))
                            j -= 1; continue
                        if p.kind == 'dir': j -= 1; continue
                        if (p.mn == 's_branch' or p.mn == 's_endpgm') and j != i - 1 and (j + 1) <= i and ins[j+1].kind == 'label' and False:
                            break
                        nd = need_states(p, c)
                        if nd > d: worst = max(worst, nd - d)
                        d += p.nop
                        if j - 1 >= 0 and ins[j-1].mn in ('s_branch', 's_endpgm'): break
                        j -= 1
                if worst > 0:
                    k = worst
                    new = []
                    while k > 0:
                        t = min(k, 16); new.append(Ins(f's_nop {t-1}')); k -= t
                    if verbose: print(f'[{self.name}] +{worst} states before: {c.text}')
                    self.ins[i:i] = new
                    total += worst
                    changed = True
                    break
        return total

    def check_waits(self):
        ins = self.ins
        labels = {x.label: i for i, x in enumerate(ins) if x.kind == 'label'}
        errs = []
        def run(start, vm, lg, taken, depth):
            i = start
            while i < len(ins):
                x = ins[i]
                if x.kind == 'wait':
                    m = re.search(r'vmcnt\((\d+)\)', x.text)
                    if m:
                        n = int(m.group(1)); vm = vm[len(vm) - n:] if n < len(vm) else vm
                        if n == 0: vm = []
                    m = re.search(r'lgkmcnt\((\d+)\)', x.text)
                    if m:
                        n = int(m.group(1))
                        if n == 0: lg = []
                        elif any(k == 'smem' for k, _ in lg): pass
                        elif n < len(lg): lg = lg[len(lg) - n:]
                elif x.kind in ('label', 'dir', 'nop'): pass
                else:
                    touched = set(x.r) | set(x.w)
                    for q, nm in ((vm, 'vm'), (lg, 'lgkm')):
                        for k, d in q:
                            hit = touched & set(d)
                            if hit:
                                if x.kind == 'vmem' and 'd16' in x.mn and k == 'vmem' and not (set(x.r) & set(d)): continue
                                if x.kind == k and x.kind in ('vmem', 'ds') and not (set(x.r) & set(d)): continue
                                errs.append(f'[{self.name}] missing {nm} wait: "{x.text}" touches {sorted(hit)[:4]}')
                    if x.vm:
                        vm = vm + [('vmem', x.dst_load)]
                        if len(vm) > 63: errs.append(f'[{self.name}] vmcnt overflow (>63) at {x.text}')
                    if x.lgkm:
                        lg = lg + [(x.kind, x.dst_load)]
                    if x.mn == 's_endpgm': return
                    if x.kind == 'branch' and x.target in labels:
                        t = labels[x.target]
                        if x.mn == 's_branch':
                            if t <= i:
                                if i in taken: return
                                taken = taken | {i}
                            i = t; continue
                        if t <= i:
                            if i not in taken:
                                run(t, list(vm), list(lg), taken | {i}, depth + 1)
                        else:
                            if depth < 6 and (i, 'f') not in taken:
                                run(t, list(vm), list(lg), taken | {(i, 'f')}, depth + 1)
                i += 1
        run(0, [], [], frozenset(), 0)
        return sorted(set(errs))

    def finalize(self):
        for x in self.ins:
            for (f, n) in x.w + x.r:
                if f == 'v': self.maxv = max(self.maxv, n)
                if f == 's': self.maxs = max(self.maxs, n)
                if f == 'a': self.maxa = max(self.maxa, n)
    def text(self):
        out = [f'.globl {self.name}', '.p2align 8', f'.type {self.name},@function', f'{self.name}:']
        for x in self.ins:
            out.append(x.text if x.kind == 'label' else '  ' + x.text)
        return '\n'.join(out) + '\n'
    def descriptor(self, kernarg=72, wgy=False):
        self.finalize()
        nv = self.maxv + 1
        acc = (nv + 3) // 4 * 4
        tot = acc + (self.maxa + 1) if self.maxa >= 0 else nv
        ns = max(self.maxs + 1, 16)
        assert acc <= 256 and tot <= 512 and ns <= 102, (acc, tot, ns)
        s = f'.p2align 6\n.amdhsa_kernel {self.name}\n  .amdhsa_next_free_vgpr {tot}\n  .amdhsa_next_free_sgpr {ns}\n'
        s += f'  .amdhsa_accum_offset {acc}\n  .amdhsa_group_segment_fixed_size 0\n  .amdhsa_kernarg_size {kernarg}\n'
        s += '  .amdhsa_user_sgpr_count 2\n  .amdhsa_user_sgpr_kernarg_segment_ptr 1\n  .amdhsa_system_sgpr_workgroup_id_x 1\n'
        if wgy: s += '  .amdhsa_system_sgpr_workgroup_id_y 1\n'
        s += '.end_amdhsa_kernel\n'
        return s

def build_file(header_comments, launches, kernels, verbose=False):
    out = list(header_comments)
    for (k, g, b, lds) in launches:
        out.append(f'; @launch kernel={k} grid=({g[0]},{g[1]},{g[2]}) block=({b[0]},{b[1]},{b[2]}) lds={lds}')
    out.append('.amdgcn_target "amdgcn-amd-amdhsa--gfx950"')
    out.append('.text')
    txt = '\n'.join(out) + '\n'
    for k in kernels:
        n = k.fix_hazards(verbose)
        errs = k.check_waits()
        for e in errs: print('WAITCHECK', e)
        txt += k.text()
    txt += '.section .rodata,"a"\n'
    for k in kernels:
        txt += k.descriptor()
        print(f'{k.name}: vgpr {k.maxv+1} agpr {k.maxa+1} sgpr {k.maxs+1} instrs {len(k.ins)}')
    return txt


def instrument(k, kidx, ws_arg_off=64, ts_off=0x1F00000):
    new = [Ins("s_memrealtime s[90:91]"), Ins("s_memtime s[88:89]"), Ins(f"s_load_dwordx2 s[92:93], s[0:1], {ws_arg_off}"), Ins("s_mov_b32 s98, s2"),
           Ins("v_readfirstlane_b32 s99, v0"), Ins("s_mov_b32 s80, 0"), Ins("s_mov_b32 s82, 0"), Ins("s_mov_b32 s84, 0"), Ins("s_mov_b32 s86, 0"), Ins("s_waitcnt lgkmcnt(0)")]
    body = []
    for x in k.ins:
        if x.kind == 'dir' and x.text.startswith('.mark'):
            n = int(x.text.split()[1])
            body.append(Ins(f"s_memtime s[{80+2*n}:{81+2*n}]"))
            continue
        if x.mn == 's_endpgm':
            for t in f"""s_waitcnt vmcnt(0) lgkmcnt(0)
            s_memrealtime s[94:95]
            s_memtime s[96:97]
            s_lshr_b32 s99, s99, 6
            s_lshl_b32 s98, s98, 3
            s_add_u32 s98, s98, s99
            s_lshl_b32 s98, s98, 5
            s_add_u32 s98, s98, {ts_off + kidx*0x10000}
            s_mov_b64 exec, 1
            s_waitcnt lgkmcnt(0)
            v_mov_b32 v0, s90
            v_mov_b32 v1, s94
            v_mov_b32 v2, s88
            v_mov_b32 v3, s96
            v_mov_b32 v4, s80
            v_mov_b32 v5, s82
            v_mov_b32 v6, s84
            v_mov_b32 v7, s86
            v_mov_b32 v8, s98
            global_store_dwordx4 v8, v[0:3], s[92:93]
            global_store_dwordx4 v8, v[4:7], s[92:93] offset:16""".split('\n'):
                body.append(Ins(t.strip()))
        body.append(x)
    k.ins = new + body

def strip_marks(k):
    k.ins = [x for x in k.ins if not (x.kind == 'dir' and x.text.startswith('.mark'))]
```

```python
import sys, math
from asmlib import *

S, D, H, DH, F = 2048, 448, 16, 28, 1792
A_X, A_WQKV, A_WO, A_BX, A_W1, A_W2, A_OUT, A_DBG, A_WS = 0, 8, 16, 24, 32, 40, 48, 56, 64
WS_XN   = 0x0000000
WS_WQKV = 0x01C0000
WS_WO   = 0x0310000
WS_W1   = 0x0380000
WS_W2   = 0x0508000
WS_CS1  = 0x0690000
WS_KM   = 0x0698000
WS_ST   = 0x06A0000
WS_QF   = 0x0700000
WS_KV   = 0x0900000
WS_OF   = 0x0D00000
WS_HF   = 0x0F00000
WS_H1   = 0x1100000
WS_END  = 0x1800000
QSCALE = math.log2(math.e) / math.sqrt(DH)

def f2u(x):
    import struct
    return struct.unpack('<I', struct.pack('<f', x))[0]

def srd(k, base, ptr_s, nbytes, add=0):
    if add:
        k.e(f"s_add_u32 s{base}, s{ptr_s}, {add:#x}")
        k.e(f"s_addc_u32 s{base+1}, s{ptr_s+1}, 0")
    else:
        k.e(f"s_mov_b32 s{base}, s{ptr_s}")
        k.e(f"s_mov_b32 s{base+1}, s{ptr_s+1}")
    k.e(f"s_mov_b32 s{base+2}, {nbytes:#x}")
    k.e(f"s_mov_b32 s{base+3}, 0x00020000")

def vr(b, n=4): return f"v[{b}:{b+n-1}]"
def mfma(k, d, a, b, c=None):
    cs = vr(d, 16) if c is None else c
    k.e(f"v_mfma_f32_32x32x16_bf16 {vr(d,16)}, {vr(a)}, {vr(b)}, {cs}")

def halfsum(k, v, tmp):
    k.e(f"v_mov_b32 v{tmp}, v{v}")
    k.e(f"v_permlane32_swap_b32 v{tmp}, v{v}")
    k.e(f"v_add_f32 v{v}, v{v}, v{tmp}")

def k0_prep():
    k = Kernel("prep_kernel")
    NWG = 240
    k.e(f"""
    s_cmp_ge_u32 s2, {NWG}
    s_cbranch_scc1 L_prep_end
    s_load_dwordx4 s[4:7], s[0:1], {A_X}
    s_load_dwordx2 s[8:9], s[0:1], {A_WO}
    s_load_dwordx4 s[12:15], s[0:1], {A_W1}
    s_load_dwordx2 s[10:11], s[0:1], {A_WS}
    v_lshrrev_b32 v1, 6, v0
    v_and_b32 v0, 63, v0
    v_readfirstlane_b32 s3, v1
    s_lshl_b32 s16, s2, 2
    s_add_u32 s16, s16, s3
    s_waitcnt lgkmcnt(0)
    """)
    srd(k, 20, 10, WS_END)
    k.e("s_cmp_ge_u32 s16, 256\n s_cbranch_scc1 L_prep_repack")
    srd(k, 24, 4, S * D * 2)
    k.e(f"""
    v_and_b32 v2, 7, v0
    v_lshrrev_b32 v3, 3, v0
    v_mul_u32_u24 v4, {D*2}, v2
    v_lshl_add_u32 v4, v3, 4, v4
    s_mul_i32 s17, s16, {8*D*2}
    """)
    for i in range(7):
        k.e(f"buffer_load_dwordx4 {vr(8+4*i)}, v4, s[24:27], s17 offen offset:{i*128}")
    k.e(f"""
    s_lshr_b32 s18, s16, 2
    s_mul_i32 s18, s18, {28*1024}
    s_and_b32 s19, s16, 3
    s_lshl_b32 s19, s19, 7
    s_add_u32 s18, s18, s19
    s_add_u32 s18, s18, {WS_XN}
    v_lshlrev_b32 v5, 4, v2
    v_lshl_add_u32 v5, v3, 9, v5
    v_mov_b32 v40, 0
    v_mov_b32 v41, 0
    v_mov_b32 v42, 0x3f803f80
    """)
    for i in range(7):
        k.e(f"s_waitcnt vmcnt({6-i})")
        for j in range(4):
            k.e(f"v_dot2c_f32_bf16 v40, v{8+4*i+j}, v42")
            k.e(f"v_dot2c_f32_bf16 v41, v{8+4*i+j}, v{8+4*i+j}")
    for v in (40, 41):
        k.e(f"v_add_f32_dpp v{v}, v{v}, v{v} row_ror:8 row_mask:0xf bank_mask:0xf")
        k.e(f"v_mov_b32 v43, v{v}")
        k.e(f"v_permlane16_swap_b32 v43, v{v}")
        k.e(f"v_add_f32 v{v}, v{v}, v43")
        halfsum(k, v, 43)
    k.e(f"""
    v_mul_f32 v40, {f2u(1.0/D):#x}, v40
    v_mul_f32 v41, {f2u(1.0/D):#x}, v41
    v_fma_f32 v41, -v40, v40, v41
    v_max_f32 v41, 0, v41
    v_add_f32 v41, {f2u(1e-5):#x}, v41
    v_rsq_f32 v41, v41
    v_mul_f32 v40, v40, v41
    """)
    for i in range(7):
        for j in range(4):
            r = 8 + 4*i + j
            k.e(f"v_lshlrev_b32 v44, 16, v{r}")
            k.e(f"v_and_b32 v45, 0xffff0000, v{r}")
            k.e(f"v_fma_f32 v44, v44, v41, -v40")
            k.e(f"v_fma_f32 v45, v45, v41, -v40")
            k.e(f"v_cvt_pk_bf16_f32 v{r}, v44, v45")
        k.e(f"buffer_store_dwordx4 {vr(8+4*i)}, v5, s[20:23], s18 offen")
        if i < 6: k.e("s_add_u32 s18, s18, 4096")
    k.e("s_endpgm")
    k.label("L_prep_repack")
    k.e(f"""
    v_and_b32 v2, 31, v0
    v_lshrrev_b32 v3, 5, v0
    v_lshlrev_b32 v2, 1, v2
    v_lshlrev_b32 v6, 4, v0
    s_sub_u32 s16, s16, 256
    s_cmp_lt_u32 s16, 192
    s_cbranch_scc1 L_prep_wqkv
    s_sub_u32 s16, s16, 192
    s_cmp_lt_u32 s16, 64
    s_cbranch_scc1 L_prep_wo
    s_sub_u32 s16, s16, 64
    s_cmp_lt_u32 s16, 224
    s_cbranch_scc1 L_prep_w1
    s_sub_u32 s16, s16, 224
    s_branch L_prep_w2
    """)
    def loads(stride, joff, soff_reg, f, voff="v4", voff_hi=None):
        prev = 0
        for j in range(8):
            d = joff(j) * stride
            vo = voff_hi if (voff_hi and j >= 4) else voff
            if d <= 4095:
                k.e(f"buffer_load_ushort v{16+8*f+j}, {vo}, s[24:27], s{soff_reg} offen offset:{d}")
            else:
                k.e(f"s_add_u32 s30, s{soff_reg}, {d}")
                k.e(f"buffer_load_ushort v{16+8*f+j}, {vo}, s[24:27], s30 offen")
    def packstore(dst_reg, colsum=False):
        for f in range(7):
            k.e(f"s_waitcnt vmcnt({(6-f)*8 + f})")
            for q in range(4):
                k.e(f"v_lshl_or_b32 v{80+4*f+q}, v{16+8*f+2*q+1}, 16, v{16+8*f+2*q}")
                if colsum: k.e(f"v_dot2c_f32_bf16 v8, v{80+4*f+q}, v9")
            if f * 1024 <= 4095:
                k.e(f"buffer_store_dwordx4 {vr(80+4*f)}, v6, s[20:23], s{dst_reg} offen offset:{f*1024}")
            else:
                if f == 4: k.e(f"s_add_u32 s{dst_reg}, s{dst_reg}, 4096")
                k.e(f"buffer_store_dwordx4 {vr(80+4*f)}, v6, s[20:23], s{dst_reg} offen offset:{(f-4)*1024}")
    nat = lambda j: j
    perm = lambda j: (j >> 2) * 8 + (j & 3)
    k.label("L_prep_wqkv")
    srd(k, 24, 6, D * 3 * D * 2)
    st = 3 * D * 2
    k.e(f"""
    v_mul_u32_u24 v4, {8*st}, v3
    v_add_u32 v4, v4, v2
    s_lshr_b32 s17, s16, 2
    s_and_b32 s18, s16, 3
    s_mul_i32 s19, s17, 0x5556
    s_lshr_b32 s19, s19, 16
    s_mul_i32 s28, s19, 3
    s_sub_u32 s28, s17, s28
    s_mul_i32 s29, s28, {D*2}
    s_mul_i32 s19, s19, {DH*2}
    s_add_u32 s29, s29, s19
    s_mul_i32 s19, s18, {7*16*st}
    s_add_u32 s29, s29, s19
    s_mul_i32 s31, s16, {7*1024}
    s_add_u32 s31, s31, {WS_WQKV}
    """)
    for f in range(7):
        loads(st, nat, 29, f)
        if f < 6: k.e(f"s_add_u32 s29, s29, {16*st}")
    packstore(31)
    k.e("s_endpgm")
    k.label("L_prep_wo")
    srd(k, 24, 8, D * D * 2)
    st = D * 2
    k.e(f"""
    v_mul_u32_u24 v4, {4*st}, v3
    v_add_u32 v4, v4, v2
    v_lshlrev_b32 v5, 30, v3
    v_add_u32 v5, v5, v4
    s_mul_i32 s17, s16, 7
    s_mul_i32 s31, s16, {7*1024}
    s_add_u32 s31, s31, {WS_WO}
    """)
    for f in range(7):
        k.e(f"""
        s_lshr_b32 s18, s17, 5
        s_lshl_b32 s18, s18, 6
        s_and_b32 s19, s17, 31
        s_lshr_b32 s28, s19, 1
        s_mul_i32 s28, s28, {DH*st}
        s_add_u32 s18, s18, s28
        s_and_b32 s19, s19, 1
        s_mul_i32 s28, s19, {16*st}
        s_add_u32 s29, s18, s28
        s_lshl_b32 s19, s19, 30
        v_mul_lo_u32 v{8+f}, v3, s19
        v_add_u32 v{8+f}, v{8+f}, v4
        s_add_u32 s17, s17, 1
        """)
        loads(st, perm, 29, f, "v4", f"v{8+f}")
    packstore(31)
    k.e("s_endpgm")
    k.label("L_prep_w1")
    srd(k, 24, 12, D * F * 2)
    st = F * 2
    k.e(f"""
    v_mul_u32_u24 v4, {4*st}, v3
    v_add_u32 v4, v4, v2
    s_lshr_b32 s17, s16, 2
    s_and_b32 s18, s16, 3
    s_lshl_b32 s29, s17, 6
    s_mul_i32 s19, s18, {7*16*st}
    s_add_u32 s29, s29, s19
    s_mul_i32 s31, s16, {7*1024}
    s_add_u32 s31, s31, {WS_W1}
    v_mov_b32 v8, 0
    v_mov_b32 v9, 0x3f803f80
    """)
    for f in range(7):
        loads(st, perm, 29, f)
        if f < 6: k.e(f"s_add_u32 s29, s29, {16*st}")
    packstore(31, colsum=True)
    halfsum(k, 8, 10)
    k.e(f"""
    s_mul_i32 s18, s18, {F*4}
    s_lshl_b32 s17, s17, 7
    s_add_u32 s18, s18, s17
    s_add_u32 s18, s18, {WS_CS1}
    v_lshlrev_b32 v2, 1, v2
    s_mov_b64 exec, 0xffffffff
    buffer_store_dword v8, v2, s[20:23], s18 offen
    s_endpgm
    """)
    k.label("L_prep_w2")
    srd(k, 24, 14, F * D * 2)
    st = D * 2
    k.e(f"""
    v_mul_u32_u24 v4, {4*st}, v3
    v_add_u32 v4, v4, v2
    s_lshr_b32 s17, s16, 4
    s_and_b32 s18, s16, 15
    s_lshl_b32 s29, s17, 6
    s_mul_i32 s19, s18, {7*16*st}
    s_add_u32 s29, s29, s19
    s_mul_i32 s31, s16, {7*1024}
    s_add_u32 s31, s31, {WS_W2}
    """)
    for f in range(7):
        loads(st, perm, 29, f)
        if f < 6: k.e(f"s_add_u32 s29, s29, {16*st}")
    packstore(31)
    k.label("L_prep_end")
    k.e("s_endpgm")
    return k, (NWG, 1, 1), (256, 1, 1), 0

def ws_prolog(k, nwg, endlabel):
    k.e(f"""
    s_cmp_ge_u32 s2, {nwg}
    s_cbranch_scc1 {endlabel}
    s_load_dwordx2 s[10:11], s[0:1], {A_WS}
    v_lshrrev_b32 v1, 6, v0
    v_and_b32 v0, 63, v0
    v_readfirstlane_b32 s3, v1
    v_lshlrev_b32 v2, 4, v0
    """)

def issue_tok_loads(k, XB, soff):
    for ks in range(28):
        if ks and ks % 4 == 0: k.e(f"s_add_u32 s{soff}, s{soff}, 4096")
        k.e(f"buffer_load_dwordx4 {vr(XB+4*ks)}, v2, s[20:23], s{soff} offen offset:{(ks%4)*1024}")

def issue_w_dma(k, ntiles, sg, sl):
    for f in range(ntiles):
        for part in range(2):
            n = 4 if part == 0 else 3
            a = f * 28672 + part * 4096
            k.e(f"s_add_u32 s40, s{sl}, {a}")
            k.e(f"s_mov_b32 m0, s40")
            k.e(f"s_add_u32 s41, s{sg}, {a}")
            for i in range(n):
                k.e(f"buffer_load_dwordx4 v2, s[20:23], s41 offen offset:{i*1024} lds")

def gemm_tile(k, f, XB, WB, RING, acc, swap=False, filler=None):
    filler = list(filler or [])
    per = (len(filler) + 27) // 28
    base = f * 28672
    def rd(ks):
        k.e(f"ds_read_b128 {vr(WB+4*(ks%RING))}, v2 offset:{base+ks*1024}") if base + ks*1024 < 65536 else \
            k.e(f"ds_read_b128 {vr(WB+4*(ks%RING))}, v3 offset:{base+ks*1024-65536}")
    pre = RING - 1
    for ks in range(pre): rd(ks)
    for ks in range(28):
        if ks + pre < 28:
            rd(ks + pre)
        outstanding = min(pre, 27 - ks)
        k.e(f"s_waitcnt lgkmcnt({outstanding})")
        w, x = WB + 4*(ks % RING), XB + 4*ks
        a, b = (x, w) if swap else (w, x)
        mfma(k, acc, a, b, "0" if ks == 0 else None)
        for _ in range(per):
            if filler: k.e(filler.pop(0))
    for s in filler: k.e(s)

def k1_qkv():
    k = Kernel("qkv_kernel")
    ws_prolog(k, 256, "L_qkv_end")
    XB, WB, RING, ACC = 8, 120, 6, 144
    k.e(f"""
    s_and_b32 s16, s2, 7
    s_lshl_b32 s16, s16, 1
    s_bfe_u32 s17, s2, 0x10003
    s_add_u32 s16, s16, s17
    s_lshr_b32 s17, s2, 4
    s_lshl_b32 s17, s17, 2
    s_add_u32 s17, s17, s3
    v_add_u32 v3, 0x10000, v2
    s_mul_i32 s18, s17, 28672
    s_add_u32 s18, s18, {WS_XN}
    s_mul_i32 s19, s16, {3*28672}
    s_mul_i32 s28, s3, 7168
    s_add_u32 s19, s19, s28
    s_add_u32 s19, s19, {WS_WQKV}
    s_waitcnt lgkmcnt(0)
    """)
    srd(k, 20, 10, WS_END)
    issue_tok_loads(k, XB, 18)
    issue_w_dma(k, 3, 19, 28)
    k.e(f"""
    s_lshl_b32 s30, s16, 6
    s_add_u32 s30, s30, s17
    s_lshl_b32 s31, s30, 11
    s_add_u32 s31, s31, {WS_QF}
    s_lshl_b32 s32, s30, 12
    s_add_u32 s32, s32, {WS_KV}
    s_lshl_b32 s33, s30, 3
    s_add_u32 s33, s33, {WS_KM}
    s_mov_b32 s34, 0
    s_mov_b32 s35, -1
    """)
    A0, A1, A2 = ACC, ACC + 16, ACC + 32
    PK = 192
    T0, T1 = 200, 201
    k.e(".mark 0")
    k.e("s_waitcnt vmcnt(14)\n s_barrier")
    k.e(".mark 1\n s_waitcnt lgkmcnt(0)")
    gemm_tile(k, 0, XB, WB, RING, A0)
    k.e("s_waitcnt vmcnt(7)\n s_barrier")
    gemm_tile(k, 1, XB, WB, RING, A1)
    k.e("s_waitcnt vmcnt(0)\n s_barrier")
    gemm_tile(k, 2, XB, WB, RING, A2, swap=True)
    k.e(".mark 2")
    k.e("s_mov_b64 exec, s[34:35]")
    for r in range(12, 16): k.e(f"v_mov_b32 v{A0+r}, 0\n v_mov_b32 v{A1+r}, 0")
    k.e("s_mov_b64 exec, -1")
    k.e(f"v_mov_b32 v{T0}, 0\n v_mov_b32 v{T1}, 0")
    for r in range(16):
        k.e(f"v_mul_f32 v{A0+r}, {f2u(QSCALE):#x}, v{A0+r}")
    for r in range(16):
        k.e(f"v_fmac_f32 v{T0}, v{A0+r}, v{A0+r}")
        k.e(f"v_fmac_f32 v{T1}, v{A1+r}, v{A1+r}")
    halfsum(k, T0, 202); halfsum(k, T1, 203)
    k.e(f"v_sqrt_f32 v{T0}, v{T0}")
    for sh in (8, 4, 2, 1):
        k.e(f"v_max_f32_dpp v{T1}, v{T1}, v{T1} row_ror:{sh} row_mask:0xf bank_mask:0xf")
    k.e(f"v_mul_f32 v{T0}, {f2u(1.02):#x}, v{T0}")
    k.e("s_mov_b64 exec, s[34:35]")
    k.e(f"v_mov_b32 v{A0+12}, v{T0}\n v_mov_b32 v{A1+12}, 1.0\n v_mov_b32 v{A1+13}, 1.0\n v_mov_b32 v{A1+14}, 1.0")
    k.e("s_mov_b64 exec, -1")
    for i in range(8): k.e(f"v_cvt_pk_bf16_f32 v{PK+i}, v{A0+2*i}, v{A0+2*i+1}")
    k.e(f"buffer_store_dwordx4 {vr(PK)}, v2, s[20:23], s31 offen")
    k.e(f"buffer_store_dwordx4 {vr(PK+4)}, v2, s[20:23], s31 offen offset:1024")
    for i in range(8): k.e(f"v_cvt_pk_bf16_f32 v{WB+i}, v{A1+2*i}, v{A1+2*i+1}")
    k.e(f"buffer_store_dwordx4 {vr(WB)}, v2, s[20:23], s32 offen")
    k.e(f"buffer_store_dwordx4 {vr(WB+4)}, v2, s[20:23], s32 offen offset:1024")
    for i in range(8): k.e(f"v_cvt_pk_bf16_f32 v{WB+8+i}, v{A2+2*i}, v{A2+2*i+1}")
    k.e("s_mov_b32 s36, 0xf0000000\n s_mov_b32 s37, 0xf0000000\n s_mov_b64 exec, s[36:37]")
    for i in range(8): k.e(f"v_mov_b32 v{WB+8+i}, 0")
    k.e("s_mov_b32 s36, 0x10000000\n s_mov_b32 s37, 0x10000000\n s_mov_b64 exec, s[36:37]")
    for i in range(8): k.e(f"v_mov_b32 v{WB+8+i}, 0x3f803f80")
    k.e("s_mov_b64 exec, -1")
    k.e(f"buffer_store_dwordx4 {vr(WB+8)}, v2, s[20:23], s32 offen offset:2048")
    k.e(f"buffer_store_dwordx4 {vr(WB+12)}, v2, s[20:23], s32 offen offset:3072")
    k.e(f"v_lshrrev_b32 v4, 2, v0")
    k.e("s_mov_b64 exec, 0x10001")
    k.e(f"buffer_store_dword v{T1}, v4, s[20:23], s33 offen")
    k.label("L_qkv_end")
    k.e("s_endpgm")
    return k, (256, 1, 1), (256, 1, 1), 3 * 28672

def k2_attn():
    k = Kernel("attn_kernel")
    ws_prolog(k, 256, "L_attn_end")
    QB = 8
    OB = 40
    SB = 104
    PB = 136
    KB = 152
    T = 216
    NB = 4
    k.e(f"""
    s_and_b32 s16, s2, 7
    s_lshl_b32 s16, s16, 1
    s_bfe_u32 s17, s2, 0x10003
    s_add_u32 s16, s16, s17
    s_lshr_b32 s17, s2, 4
    s_lshl_b32 s18, s16, 17
    s_lshl_b32 s19, s17, 13
    s_add_u32 s18, s18, s19
    s_add_u32 s18, s18, {WS_QF}
    s_lshl_b32 s19, s16, 18
    s_add_u32 s19, s19, {WS_KV}
    s_lshl_b32 s28, s3, 16
    s_add_u32 s28, s28, s19
    s_lshl_b32 s29, s16, 9
    s_add_u32 s29, s29, {WS_KM}
    v_lshlrev_b32 v3, 3, v0
    s_waitcnt lgkmcnt(0)
    """)
    srd(k, 20, 10, WS_END)
    k.e(f"buffer_load_dwordx2 v[{T}:{T+1}], v3, s[20:23], s29 offen")
    for q in range(4):
        if q == 2: k.e("s_add_u32 s30, s18, 4096")
        so = "s18" if q < 2 else "s30"
        k.e(f"buffer_load_dwordx4 {vr(QB+8*q)}, v2, s[20:23], {so} offen offset:{(q%2)*2048}")
        k.e(f"buffer_load_dwordx4 {vr(QB+8*q+4)}, v2, s[20:23], {so} offen offset:{(q%2)*2048+1024}")
    def ldkv(b, sr="s[24:27]"):
        for i in range(4):
            k.e(f"buffer_load_dwordx4 {vr(KB+16*b+4*i)}, v2, {sr}, s28 offen offset:{i*1024}")
        k.e("s_add_u32 s28, s28, 4096")
    k.e("s_mov_b32 s24, s10\n s_mov_b32 s25, s11\n s_add_u32 s26, s28, 0x10000\n s_mov_b32 s27, 0x00020000")
    for b in range(NB): ldkv(b)
    for r in range(64): k.e(f"v_mov_b32 v{OB+r}, 0")
    k.e(f"s_waitcnt vmcnt({8 + 4*NB})")
    k.e(f"v_max_f32 v{T}, v{T}, v{T+1}")
    for sh in (8, 4, 2, 1):
        k.e(f"v_max_f32_dpp v{T}, v{T}, v{T} row_ror:{sh} row_mask:0xf bank_mask:0xf")
    k.e(f"v_mov_b32 v{T+1}, v{T}\n v_permlane16_swap_b32 v{T+1}, v{T}\n v_max_f32 v{T}, v{T}, v{T+1}")
    k.e(f"v_mov_b32 v{T+1}, v{T}\n v_permlane32_swap_b32 v{T+1}, v{T}\n v_max_f32 v{T}, v{T}, v{T+1}")
    k.e(f"v_sqrt_f32 v{T}, v{T}")
    k.e(f"v_mul_f32 v{T}, {f2u(-1.02):#x}, v{T}")
    k.e(f"s_waitcnt vmcnt({4*NB})")
    k.e("s_mov_b32 s34, 0\n s_mov_b32 s35, -1\n s_mov_b64 exec, s[34:35]")
    for q in range(4):
        r = QB + 8*q + 6
        k.e(f"v_lshlrev_b32 v{T+1}, 16, v{r}")
        k.e(f"v_mul_f32 v{T+1}, v{T+1}, v{T}")
        k.e(f"v_cvt_pk_bf16_f32 v{r}, v{T+1}, 0")
    k.e("s_mov_b64 exec, -1")
    def qk(b, q, s):
        mf1 = f"v_mfma_f32_32x32x16_bf16 {vr(SB+16*s,16)}, {vr(KB+16*b)}, {vr(QB+8*q)}, 0"
        mf2 = f"v_mfma_f32_32x32x16_bf16 {vr(SB+16*s,16)}, {vr(KB+16*b+4)}, {vr(QB+8*q+4)}, {vr(SB+16*s,16)}"
        return mf1, mf2
    def pv(b, q, p):
        mf1 = f"v_mfma_f32_32x32x16_bf16 {vr(OB+16*q,16)}, {vr(KB+16*b+8)}, {vr(PB+8*p)}, {vr(OB+16*q,16)}"
        mf2 = f"v_mfma_f32_32x32x16_bf16 {vr(OB+16*q,16)}, {vr(KB+16*b+12)}, {vr(PB+8*p+4)}, {vr(OB+16*q,16)}"
        return mf1, mf2
    k.e(f"s_waitcnt vmcnt({4*(NB-1)})")
    for m in qk(0, 0, 0): k.e(m)
    k.e("s_mov_b32 s31, 0")
    k.e(".mark 0")
    k.label("L_attn_loop")
    for b in range(NB):
        for q in range(4):
            i = b * 4 + q
            s, p = i % 2, i % 2
            nb_, nq = (b, q + 1) if q < 3 else ((b + 1) % NB, 0)
            if q == 0:
                pass
            if q == 3:
                k.e(f"s_waitcnt vmcnt({4*(NB-2)})")
            q1, q2 = qk(nb_, nq, 1 - s)
            pb_, pq, pp = (b, q - 1, 1 - p) if q > 0 else ((b - 1) % NB, 3, 1 - p)
            E = lambda r: f"v_exp_f32 v{SB+16*s+r}, v{SB+16*s+r}"
            C = lambda j: f"v_cvt_pk_bf16_f32 v{PB+8*p+j}, v{SB+16*s+2*j}, v{SB+16*s+2*j+1}"
            p1, p2 = pv(b, q, p)
            seq = [q1, E(0), E(1), E(2), E(3), E(4), C(0), q2, E(5), E(6), C(1), E(7), E(8), C(2), E(9), C(3),
                   p1, E(10), E(11), C(4), E(12), E(13), C(5), E(14), E(15), C(6), C(7), p2]
            for x in seq: k.e(x)
            if q == 3:
                ldkv(b)
    k.e("s_add_u32 s31, s31, 1\n s_cmp_lt_u32 s31, 4\n s_cbranch_scc1 L_attn_loop")
    k.e(".mark 1")
    k.e("s_waitcnt vmcnt(0)")
    k.e("s_lshl_b32 s36, s3, 12\n v_add_u32 v4, s36, v2")
    for q in range(4):
        for i in range(4):
            k.e(f"ds_write_b128 v4, {vr(OB+16*q+4*i)} offset:{q*16384+i*1024}")
    k.e("s_lshl_b32 s36, s3, 14\n v_add_u32 v5, s36, v2")
    k.e("s_waitcnt lgkmcnt(0)\n s_barrier")
    for src in range(4):
        for i in range(4):
            k.e(f"ds_read_b128 {vr(OB+16*src+4*i)}, v5 offset:{src*4096+i*1024}")
    k.e("s_waitcnt lgkmcnt(8)")
    for r in range(16): k.e(f"v_add_f32 v{OB+r}, v{OB+r}, v{OB+16+r}")
    k.e("s_waitcnt lgkmcnt(0)")
    for r in range(16): k.e(f"v_add_f32 v{OB+32+r}, v{OB+32+r}, v{OB+48+r}")
    for r in range(16): k.e(f"v_add_f32 v{OB+r}, v{OB+r}, v{OB+32+r}")
    k.e(".mark 2")
    k.label("L_attn_fin")
    k.e(f"v_mov_b32 v{T}, v{OB+12}\n v_mov_b32 v{T+1}, v{OB+12}\n v_permlane32_swap_b32 v{T+1}, v{T}")
    k.e(f"v_mov_b32 v{T+2}, {f2u(2.0**-90):#x}")
    k.e(f"v_cmp_nge_f32 vcc, v{T}, v{T+2}")
    k.e(f"v_rcp_f32 v{T}, v{T}")
    k.e("s_cbranch_vccnz L_attn_slow")
    k.label("L_attn_store")
    for r in range(16): k.e(f"v_mul_f32 v{OB+r}, v{OB+r}, v{T}")
    for i in range(8): k.e(f"v_cvt_pk_bf16_f32 v{PB+i}, v{OB+2*i}, v{OB+2*i+1}")
    k.e(f"""
    s_lshl_b32 s36, s17, 2
    s_add_u32 s36, s36, s3
    s_lshl_b32 s36, s36, 15
    s_lshl_b32 s37, s16, 11
    s_add_u32 s36, s36, s37
    s_add_u32 s36, s36, {WS_OF}
    buffer_store_dwordx4 {vr(PB)}, v2, s[20:23], s36 offen
    buffer_store_dwordx4 {vr(PB+4)}, v2, s[20:23], s36 offen offset:1024
    """)
    k.label("L_attn_end")
    k.e("s_endpgm")
    k.label("L_attn_slow")
    k.e(f"""
    s_lshl_b32 s36, s3, 11
    s_add_u32 s36, s36, s18
    buffer_load_dwordx4 {vr(QB)}, v2, s[20:23], s36 offen
    buffer_load_dwordx4 {vr(QB+4)}, v2, s[20:23], s36 offen offset:1024
    v_mov_b32 v{T+4}, 0xff7fffff
    s_mov_b32 s28, s19
    s_mov_b32 s31, 0
    s_waitcnt vmcnt(0)
    s_mov_b64 exec, s[34:35]
    v_mov_b32 v{QB+6}, 0
    v_mov_b32 v{QB+7}, 0
    s_mov_b64 exec, -1
    """)
    k.label("L_attn_p1")
    k.e(f"""
    buffer_load_dwordx4 {vr(KB)}, v2, s[20:23], s28 offen
    buffer_load_dwordx4 {vr(KB+4)}, v2, s[20:23], s28 offen offset:1024
    s_add_u32 s28, s28, 4096
    s_waitcnt vmcnt(0)
    """)
    for m in qk(0, 0, 0): k.e(m)
    for r in range(16): k.e(f"v_max_f32 v{T+4}, v{T+4}, v{SB+r}")
    k.e("s_add_u32 s31, s31, 1\n s_cmp_lt_u32 s31, 64\n s_cbranch_scc1 L_attn_p1")
    k.e(f"v_mov_b32 v{T+1}, v{T+4}\n v_permlane32_swap_b32 v{T+1}, v{T+4}\n v_max_f32 v{T+4}, v{T+4}, v{T+1}")
    k.e(f"""
    v_sub_f32 v{T+4}, 0, v{T+4}
    v_and_b32 v{T+5}, 0xffff0000, v{T+4}
    v_sub_f32 v{T+4}, v{T+4}, v{T+5}
    v_and_b32 v{T+6}, 0xffff0000, v{T+4}
    v_sub_f32 v{T+4}, v{T+4}, v{T+6}
    v_lshrrev_b32 v{T+5}, 16, v{T+5}
    v_or_b32 v{T+5}, v{T+5}, v{T+6}
    v_lshrrev_b32 v{T+4}, 16, v{T+4}
    s_mov_b64 exec, s[34:35]
    v_mov_b32 v{QB+6}, v{T+5}
    v_mov_b32 v{QB+7}, v{T+4}
    s_mov_b64 exec, -1
    s_mov_b32 s28, s19
    s_mov_b32 s31, 0
    """)
    for r in range(16): k.e(f"v_mov_b32 v{OB+r}, 0")
    k.label("L_attn_p2")
    ldkv(0, "s[20:23]")
    k.e("s_waitcnt vmcnt(0)")
    for m in qk(0, 0, 0): k.e(m)
    for r in range(16): k.e(f"v_exp_f32 v{SB+r}, v{SB+r}")
    for j in range(8): k.e(f"v_cvt_pk_bf16_f32 v{PB+j}, v{SB+2*j}, v{SB+2*j+1}")
    for m in pv(0, 0, 0): k.e(m)
    k.e("s_add_u32 s31, s31, 1\n s_cmp_lt_u32 s31, 64\n s_cbranch_scc1 L_attn_p2")
    k.e(f"v_mov_b32 v{T}, v{OB+12}\n v_mov_b32 v{T+1}, v{OB+12}\n v_permlane32_swap_b32 v{T+1}, v{T}")
    k.e(f"v_rcp_f32 v{T}, v{T}")
    k.e("s_branch L_attn_store")
    return k, (256, 1, 1), (256, 1, 1), 65536

def splitk_gemm(name, KS, w_off, a_off, epi, DEPTH):
    k = Kernel(name)
    end = f"L_{name}_end"
    ws_prolog(k, 224, end)
    kw = KS // 4
    ACC = 8
    LB = 72
    k.e(f"""
    s_load_dwordx2 s[4:5], s[0:1], {A_X}
    s_load_dwordx2 s[6:7], s[0:1], {A_OUT}
    s_and_b32 s16, s2, 7
    s_lshr_b32 s17, s2, 3
    s_mul_i32 s18, s17, 37
    s_lshr_b32 s18, s18, 8
    s_mul_i32 s19, s18, 7
    s_sub_u32 s17, s17, s19
    s_lshl_b32 s16, s16, 2
    s_add_u32 s16, s16, s18
    s_mul_i32 s28, s17, {2*KS*1024}
    s_mul_i32 s30, s3, {kw*1024}
    s_add_u32 s28, s28, s30
    s_add_u32 s28, s28, {w_off}
    s_add_u32 s29, s28, {KS*1024}
    s_mul_i32 s31, s16, {2*KS*1024}
    s_add_u32 s30, s30, s31
    s_add_u32 s30, s30, {a_off}
    s_add_u32 s31, s30, {KS*1024}
    s_waitcnt lgkmcnt(0)
    """)
    srd(k, 20, 10, WS_END)
    def ld(ks):
        b = LB + 16 * (ks % DEPTH)
        if ks and ks % 4 == 0:
            for s in (28, 29, 30, 31): k.e(f"s_add_u32 s{s}, s{s}, 4096")
        for i, s in enumerate((28, 29, 30, 31)):
            k.e(f"buffer_load_dwordx4 {vr(b+4*i)}, v2, s[20:23], s{s} offen offset:{(ks%4)*1024}")
    npre = min(DEPTH - 1, kw) if kw >= DEPTH else kw
    extra = epi(k, 'prefetch')
    for ks in range(npre): ld(ks)
    issued = npre
    k.e(".mark 0")
    for ks in range(kw):
        if issued < kw:
            ld(issued); issued += 1
        k.e(f"s_waitcnt vmcnt({4*(issued-ks-1)})")
        if ks == 0: k.e(".mark 1")
        b = LB + 16 * (ks % DEPTH)
        for ft in range(2):
            for tt in range(2):
                mfma(k, ACC + 16*(ft*2+tt), b + 4*ft, b + 8 + 4*tt, "0" if ks == 0 else None)
    k.e(".mark 2")
    k.e("s_lshl_b32 s36, s3, 12\n v_add_u32 v4, s36, v2")
    for t in range(4):
        for i in range(4):
            k.e(f"ds_write_b128 v4, {vr(ACC+16*t+4*i)} offset:{t*16384+i*1024}")
    k.e("s_lshl_b32 s36, s3, 14\n v_add_u32 v5, s36, v2")
    k.e("s_waitcnt lgkmcnt(0)\n s_barrier")
    for src in range(4):
        for i in range(4):
            k.e(f"ds_read_b128 {vr(ACC+16*src+4*i)}, v5 offset:{src*4096+i*1024}")
    k.e("s_waitcnt lgkmcnt(8)")
    for r in range(16): k.e(f"v_add_f32 v{ACC+r}, v{ACC+r}, v{ACC+16+r}")
    k.e("s_waitcnt lgkmcnt(0)")
    for r in range(16): k.e(f"v_add_f32 v{ACC+32+r}, v{ACC+32+r}, v{ACC+48+r}")
    for r in range(16): k.e(f"v_add_f32 v{ACC+r}, v{ACC+r}, v{ACC+32+r}")
    k.e(".mark 3")
    epi(k, 'final')
    k.label(end)
    k.e("s_endpgm")
    return k, (224, 1, 1), (256, 1, 1), 65536

def tile_ids(k):
    k.e(f"""
    s_lshr_b32 s32, s3, 1
    s_lshl_b32 s34, s17, 1
    s_add_u32 s32, s32, s34
    s_and_b32 s33, s3, 1
    s_lshl_b32 s34, s16, 1
    s_add_u32 s33, s33, s34
    """)

def k3_wo():
    ACC, R = 8, 240
    def epi(k, what):
        if what == 'prefetch':
            tile_ids(k)
            srd(k, 24, 4, S * D * 2)
            k.e(f"""
            v_and_b32 v6, 31, v0
            v_lshrrev_b32 v7, 5, v0
            v_mul_u32_u24 v3, {D*2}, v6
            v_lshl_add_u32 v3, v7, 3, v3
            s_mul_i32 s34, s33, {32*D*2}
            s_lshl_b32 s35, s32, 6
            s_add_u32 s34, s34, s35
            """)
            for i in range(4):
                k.e(f"buffer_load_dwordx2 v[{R+2*i}:{R+2*i+1}], v3, s[24:27], s34 offen offset:{16*i}")
            return 4
        for i in range(8):
            k.e(f"v_lshlrev_b32 v{ACC+16}, 16, v{R+i}")
            k.e(f"v_and_b32 v{ACC+17}, 0xffff0000, v{R+i}")
            k.e(f"v_add_f32 v{ACC+2*i}, v{ACC+2*i}, v{ACC+16}")
            k.e(f"v_add_f32 v{ACC+2*i+1}, v{ACC+2*i+1}, v{ACC+17}")
        for i in range(8): k.e(f"v_cvt_pk_bf16_f32 v{R+i}, v{ACC+2*i}, v{ACC+2*i+1}")
        k.e(f"""
        s_mul_i32 s34, s33, {28*1024}
        s_lshl_b32 s35, s32, 11
        s_add_u32 s34, s34, s35
        s_add_u32 s34, s34, {WS_HF}
        buffer_store_dwordx4 {vr(R)}, v2, s[20:23], s34 offen
        buffer_store_dwordx4 {vr(R+4)}, v2, s[20:23], s34 offen offset:1024
        v_mov_b32 v{ACC+18}, 0
        v_mov_b32 v{ACC+19}, 0
        v_mov_b32 v{ACC+20}, 0x3f803f80
        """)
        for i in range(8):
            k.e(f"v_dot2c_f32_bf16 v{ACC+18}, v{R+i}, v{ACC+20}")
            k.e(f"v_dot2c_f32_bf16 v{ACC+19}, v{R+i}, v{R+i}")
        halfsum(k, ACC+18, ACC+21); halfsum(k, ACC+19, ACC+22)
        k.e(f"""
        s_cmp_ge_u32 s32, 7
        s_cselect_b32 s35, 8, 0
        s_lshl_b32 s34, s32, 3
        s_add_u32 s34, s34, s35
        s_lshl_b32 s35, s33, 12
        s_add_u32 s34, s34, s35
        s_add_u32 s34, s34, {WS_ST}
        v_lshlrev_b32 v6, 7, v6
        s_mov_b64 exec, 0xffffffff
        buffer_store_dwordx2 v[{ACC+18}:{ACC+19}], v6, s[20:23], s34 offen
        """)
    return splitk_gemm("wo_kernel", 32, WS_WO, WS_OF, epi, 8)

def k5_w2():
    ACC, R = 8, 240
    def epi(k, what):
        if what == 'prefetch':
            tile_ids(k)
            srd(k, 24, 6, S * D * 2)
            k.e(f"""
            s_mul_i32 s34, s33, {28*1024}
            s_lshl_b32 s35, s32, 11
            s_add_u32 s34, s34, s35
            s_add_u32 s34, s34, {WS_HF}
            buffer_load_dwordx4 {vr(R)}, v2, s[20:23], s34 offen
            buffer_load_dwordx4 {vr(R+4)}, v2, s[20:23], s34 offen offset:1024
            v_and_b32 v6, 31, v0
            v_lshrrev_b32 v7, 5, v0
            v_mul_u32_u24 v3, {D*2}, v6
            v_lshl_add_u32 v3, v7, 4, v3
            s_mul_i32 s34, s33, {32*D*2}
            s_lshl_b32 s35, s32, 6
            s_add_u32 s34, s34, s35
            """)
            return 2
        for i in range(8):
            k.e(f"v_lshlrev_b32 v{ACC+16}, 16, v{R+i}")
            k.e(f"v_and_b32 v{ACC+17}, 0xffff0000, v{R+i}")
            k.e(f"v_add_f32 v{ACC+2*i}, v{ACC+2*i}, v{ACC+16}")
            k.e(f"v_add_f32 v{ACC+2*i+1}, v{ACC+2*i+1}, v{ACC+17}")
        for i in range(8): k.e(f"v_cvt_pk_bf16_f32 v{R+i}, v{ACC+2*i}, v{ACC+2*i+1}")
        k.e(f"v_permlane32_swap_b32 v{R}, v{R+2}\n v_permlane32_swap_b32 v{R+1}, v{R+3}")
        k.e(f"v_permlane32_swap_b32 v{R+4}, v{R+6}\n v_permlane32_swap_b32 v{R+5}, v{R+7}")
        k.e(f"buffer_store_dwordx4 {vr(R)}, v3, s[24:27], s34 offen")
        k.e(f"buffer_store_dwordx4 {vr(R+4)}, v3, s[24:27], s34 offen offset:32")
    return splitk_gemm("w2_kernel", 112, WS_W2, WS_H1, epi, 10)

def k4_w1():
    k = Kernel("w1_kernel")
    ws_prolog(k, 224, "L_w1_end")
    XB, WB, RING, ACC = 8, 120, 6, 144
    CS = 176
    ST = 192
    PK = 208
    T = 216
    LCS = 4 * 28672
    k.e(f"""
    s_and_b32 s16, s2, 7
    s_lshr_b32 s17, s2, 3
    s_cmp_ge_u32 s17, 14
    s_cselect_b32 s18, 1, 0
    s_cselect_b32 s19, 14, 0
    s_sub_u32 s17, s17, s19
    s_lshl_b32 s16, s16, 1
    s_add_u32 s16, s16, s18
    s_lshl_b32 s16, s16, 2
    s_add_u32 s16, s16, s3
    v_add_u32 v3, 0x10000, v2
    s_mul_i32 s18, s16, 28672
    s_add_u32 s18, s18, {WS_HF}
    s_mul_i32 s19, s17, {4*28672}
    s_mul_i32 s28, s3, 7168
    s_add_u32 s19, s19, s28
    s_add_u32 s19, s19, {WS_W1}
    s_lshl_b32 s29, s16, 12
    s_add_u32 s29, s29, {WS_ST}
    s_lshl_b32 s30, s17, 9
    s_lshl_b32 s31, s3, 7
    s_add_u32 s30, s30, s31
    s_add_u32 s30, s30, {WS_CS1}
    v_and_b32 v6, 31, v0
    v_lshrrev_b32 v7, 5, v0
    v_lshlrev_b32 v4, 7, v6
    v_lshl_add_u32 v4, v7, 6, v4
    v_lshlrev_b32 v5, 2, v6
    v_mul_u32_u24 v1, {2*F*4}, v7
    v_add_u32 v1, v1, v5
    s_waitcnt lgkmcnt(0)
    """)
    srd(k, 20, 10, WS_END)
    for i in range(4):
        k.e(f"buffer_load_dwordx4 {vr(ST+4*i)}, v4, s[20:23], s29 offen offset:{16*i}")
    k.e(f"buffer_load_dword v{T}, v1, s[20:23], s30 offen")
    k.e(f"s_add_u32 s30, s30, {F*4}")
    k.e(f"buffer_load_dword v{T+1}, v1, s[20:23], s30 offen")
    issue_tok_loads(k, XB, 18)
    issue_w_dma(k, 4, 19, 28)
    k.e("s_waitcnt vmcnt(56)")
    k.e(f"v_add_f32 v{T}, v{T}, v{T+1}")
    halfsum(k, T, T+1)
    k.e(f"s_lshl_b32 s31, s3, 7\n s_add_u32 s31, s31, {LCS}\n v_add_u32 v5, s31, v5")
    k.e(f"ds_write_b32 v5, v{T}")
    for i in range(1, 7):
        k.e(f"v_add_f32 v{ST}, v{ST}, v{ST+2*i}\n v_add_f32 v{ST+1}, v{ST+1}, v{ST+2*i+1}")
    halfsum(k, ST, T+1); halfsum(k, ST+1, T+2)
    MEAN, RSTD, NRL = ST, ST+1, ST+2
    k.e(f"""
    v_mul_f32 v{ST}, {f2u(1.0/D):#x}, v{ST}
    v_mul_f32 v{ST+1}, {f2u(1.0/D):#x}, v{ST+1}
    v_fma_f32 v{ST+1}, -v{ST}, v{ST}, v{ST+1}
    v_max_f32 v{ST+1}, 0, v{ST+1}
    v_add_f32 v{ST+1}, {f2u(1e-5):#x}, v{ST+1}
    v_rsq_f32 v{ST+1}, v{ST+1}
    v_mul_f32 v{NRL}, {f2u(-math.log2(math.e)):#x}, v{ST+1}
    v_lshlrev_b32 v7, 4, v7
    v_add_u32 v7, {LCS}, v7
    s_mul_i32 s32, s16, {112*1024}
    s_lshl_b32 s33, s17, 13
    s_add_u32 s32, s32, s33
    s_add_u32 s32, s32, {WS_H1}
    """)
    def epilogue(f):
        a = ACC + 16 * (f % 2)
        L = []
        for i in range(4): L.append(f"ds_read_b128 {vr(CS+4*i)}, v7 offset:{f*128+i*32}")
        return L
    def epi_math(f):
        a = ACC + 16 * (f % 2)
        L = []
        for r in range(16):
            t0, t1 = T + 2 + (r % 2) * 2, T + 3 + (r % 2) * 2
            L.append(f"v_fma_f32 v{a+r}, -v{MEAN}, v{CS+r}, v{a+r}")
            L.append(f"v_mul_f32 v{t0}, v{a+r}, v{NRL}")
            L.append(f"v_exp_f32 v{t0}, v{t0}")
            L.append(f"v_mul_f32 v{a+r}, v{a+r}, v{RSTD}")
            L.append(f"v_add_f32 v{t0}, 1.0, v{t0}")
            L.append(f"v_rcp_f32 v{t0}, v{t0}")
            L.append(f"s_nop 0")
            L.append(f"v_mul_f32 v{a+r}, v{a+r}, v{t0}")
            if r % 2 == 1: L.append(f"v_cvt_pk_bf16_f32 v{PK+r//2}, v{a+r-1}, v{a+r}")
        so = (f % 2) * 2048
        if f == 2: L.append("s_add_u32 s32, s32, 4096")
        L.append(f"buffer_store_dwordx4 {vr(PK)}, v2, s[20:23], s32 offen offset:{so}")
        L.append(f"buffer_store_dwordx4 {vr(PK+4)}, v2, s[20:23], s32 offen offset:{so+1024}")
        return L
    nst = 0
    for f in range(4):
        if f == 0: k.e(".mark 0")
        k.e(f"s_waitcnt vmcnt({7*(3-f) + nst}) lgkmcnt(0)\n s_barrier")
        if f in (0, 1): k.e(f".mark {f+1}\n s_waitcnt lgkmcnt(0)")
        if f > 0:
            gemm_tile(k, f, XB, WB, RING, ACC + 16*(f % 2), filler=epi_math(f - 1))
            nst += 2
        else:
            gemm_tile(k, f, XB, WB, RING, ACC + 16*(f % 2))
        for x in epilogue(f): k.e(x)
    k.e("s_waitcnt lgkmcnt(0)")
    k.e(".mark 3")
    for x in epi_math(3): k.e(x)
    k.label("L_w1_end")
    k.e("s_endpgm")
    return k, (224, 1, 1), (256, 1, 1), LCS + 512

HEADER = open('sequential_preLN__mha_block__dense_activation_silu__prompt.s.ref').read().split('\n')
HEADER = [l for l in HEADER if l.startswith(';') and '@launch' not in l and 'Override' not in l and 'grid=ceil' not in l]

def main(out):
    ks = [k0_prep(), k1_qkv(), k2_attn(), k3_wo(), k4_w1(), k5_w2()]
    if '-ts' in sys.argv:
        for i, (k, _, _, _) in enumerate(ks): instrument(k, i)
    else:
        for (k, _, _, _) in ks: strip_marks(k)
    launches = [(k.name, g, b, lds) for (k, g, b, lds) in ks]
    txt = build_file(HEADER, launches, [k for (k, _, _, _) in ks], verbose='-v' in sys.argv)
    open(out, 'w').write(txt)

if __name__ == '__main__':
    main(sys.argv[1] if len(sys.argv) > 1 and not sys.argv[1].startswith('-') else
         'sequential_preLN__mha_block__dense_activation_silu__prompt.s')
```
